```python
import torch

def _softmax(x, axis=-1):
    return torch.softmax(x, dim=axis)
def _gelu(x):
    return torch.nn.functional.gelu(x, approximate="tanh")
def _silu(x):
    return torch.nn.functional.silu(x)
def _sigmoid(x):
    return torch.sigmoid(x)
def _layernorm(x, axis=-1, eps=1e-5):
    m = x.mean(dim=axis, keepdim=True)
    v = x.var(dim=axis, keepdim=True, unbiased=False)
    return (x - m) / torch.sqrt(v + eps)
def _scatter_add(tgt, idx, src, axis=0):
    return tgt.clone().index_add_(axis, idx, src)
def _segment_sum(src, seg, n):
    out = torch.zeros((n,) + src.shape[1:], dtype=src.dtype)
    return out.index_add_(0, seg, src)
def _pad(x, pw):
    flat = tuple(v for pair in reversed(pw) for v in pair)
    return torch.nn.functional.pad(x, flat)

kernel_name = 'gated_mix__sliding_block_cached__dense_activation_gelu__decode'

def setup_inputs():

    _w = (lambda a: (lambda t: t.to(torch.bfloat16) if t.is_floating_point() else t)(torch.as_tensor(a)))
    def _A_setup():
        B, Sq, D = 2, 1, 512
        Hq, Hkv, Sk, Dh = 32, 8, 8192, 128
        assert Hq % Hkv == 0, (Hq, Hkv)
        return {
            "x": _w((lambda *s: torch.randn(*s, dtype=torch.bfloat16) * 0.05)(B, Sq, D)),
            "k_cache": _w((lambda *s: torch.randn(*s, dtype=torch.bfloat16) * 6.4)(B, Hkv, Sk, Dh)),
            "v_cache": _w((lambda *s: torch.randn(*s, dtype=torch.bfloat16) * 0.4)(B, Hkv, Sk, Dh)),
            "wq": _w((lambda *s: torch.randn(*s, dtype=torch.bfloat16) * 6.4)(D, Hq * Dh) * (D ** -0.5)),
            "wo": _w((lambda *s: torch.randn(*s, dtype=torch.bfloat16) * 0.4)(Hq * Dh, D) * ((Hq * Dh) ** -0.5)),
        }
    _A_in = _A_setup()

    def _B_setup():
        B, S, D, F = 2, 1, 512, 1792
        return {
            "x": _w((lambda *s: torch.randn(*s, dtype=torch.bfloat16) * 0.05)(B, S, D)),
            "w1": _w((lambda *s: torch.randn(*s, dtype=torch.bfloat16) * 3.2)(D, F) * (D ** -0.5)),
            "b1": _w((lambda *s: torch.randn(*s, dtype=torch.bfloat16) * 3.2)(F) * 0.01),
            "w2": _w((lambda *s: torch.randn(*s, dtype=torch.bfloat16) * 0.4)(F, D) * (F ** -0.5)),
            "b2": _w((lambda *s: torch.randn(*s, dtype=torch.bfloat16) * 0.8)(D) * 0.01),
        }
    _B_in = _B_setup()

    return {
        "A_x": _A_in["x"],
        "A_k_cache": _A_in["k_cache"],
        "A_v_cache": _A_in["v_cache"],
        "A_wq": _A_in["wq"],
        "A_wo": _A_in["wo"],
        "B_x": _B_in["x"],
        "B_w1": _B_in["w1"],
        "B_b1": _B_in["b1"],
        "B_w2": _B_in["w2"],
        "B_b2": _B_in["b2"],
        "gate_w": _w((lambda *s: torch.randn(*s, dtype=torch.bfloat16) * 0.2)(512) * 16.0),
    }

def reference(A_x, A_k_cache, A_v_cache, A_wq, A_wo, B_x, B_w1, B_b1, B_w2, B_b2, gate_w):
    def _A_ref(x, k_cache, v_cache, wq, wo):
        B, Sq, D = x.shape
        Hq, Dh = 32, 128
        Hkv, Sk = k_cache.shape[1], k_cache.shape[2]
        W = min(4096, max(256, Sk // 4))
        rep = Hq // Hkv
        q = (lambda x, *d: x.permute(*d))((x @ wq).reshape(B, Sq, Hq, Dh), 0, 2, 1, 3)
        k = (lambda x, n, axis: torch.repeat_interleave(x, n, dim=axis))(k_cache[:, :, Sk - W:, :], rep, axis=1)
        v = (lambda x, n, axis: torch.repeat_interleave(x, n, dim=axis))(v_cache[:, :, Sk - W:, :], rep, axis=1)
        scores = torch.einsum("bhqd,bhkd->bhqk", q, k) * (Dh ** -0.5)
        p = _softmax(scores, axis=-1)
        o = torch.einsum("bhqk,bhkd->bhqd", p, v)
        return (lambda x, *d: x.permute(*d))(o, 0, 2, 1, 3).reshape(B, Sq, Hq * Dh) @ wo

    def _B_ref(x, w1, b1, w2, b2):
        h = torch.einsum("bsd,df->bsf", x, w1) + b1
        h = _gelu(h)
        return torch.einsum("bsf,fd->bsd", h, w2) + b2

    x = A_x
    g = _sigmoid((x * gate_w).sum(-1, keepdims=True))
    a = _A_ref(x, A_k_cache, A_v_cache, A_wq, A_wo)
    b = _B_ref(x, B_w1, B_b1, B_w2, B_b2)
    return g * a + (1 - g) * b
```

```python
import sys
NAME = 'gated_mix__sliding_block_cached__dense_activation_gelu__decode'

HEADER = open('cdna_kernels/%s.s.ref' % NAME).read().split('; Override launch')[0]

WS_QP = 0x10000
WS_HP = 0x30000
WS_ML = 0x50000
WS_OP = 0x80000
WS_FP = 0x100000
WS_STAMP = 0x8000000
L_WQ = 0x0000
L_K = 0x4000
L_W1 = 0xC000
L_V = 0xE000
L_WO = 0x16000
L_W2 = 0x1A000
L_MISC = 0x1C000
L_Q = L_MISC
L_P = L_MISC + 0x500
L_ZERO = L_MISC + 0xA00
L_FLAG = L_MISC + 0xB00
L_ACTH = L_MISC + 0xC00
L_ACT = L_MISC + 0x1000
LDS_BYTES = L_MISC + 0x1A00

class G:
    def __init__(s, **opt):
        s.o = []
        s.opt = dict(W=24, nt=True, stamps=False, fp_layout='cons', spin_cap=True)
        s.opt.update(opt)
        s.lab = 0
    def e(s, txt):
        for line in txt.strip('\n').split('\n'):
            s.o.append('    ' + line.strip() if not line.strip().endswith(':') else line.strip())
    def label(s, p='L'):
        s.lab += 1
        return f'{p}_{s.lab}'
    def stamp(s, k):
        if s.opt['stamps']:
            s.e(f's_memrealtime s[{84+2*k}:{85+2*k}]')
    def flush_stamps(s, n):
        if not s.opt['stamps']: return
        s.e('s_mov_b64 exec, -1')
        s.e('s_waitcnt lgkmcnt(0)')
        s.e('v_mov_b32 v250, 0')
        for k in range(n): s.e(f'v_writelane_b32 v250, s{84+2*k}, {k}')
        s.e(f's_lshl_b32 s6, s2, 8\ns_lshl_b32 s7, s3, 5\ns_add_u32 s6, s6, s7\ns_add_u32 s6, s6, {WS_STAMP}')
        s.e('s_add_u32 s6, s34, s6\ns_addc_u32 s7, s35, 0')
        s.e('v_lshlrev_b32 v251, 2, v0')
        s.e('s_mov_b64 exec, 0xff')
        s.e('global_store_dword v251, v250, s[6:7]')
    def srd(s, dst, ptr, size):
        s.e(f's_add_u32 s{dst}, s{ptr}, s6\ns_addc_u32 s{dst+1}, s{ptr+1}, 0\ns_mov_b32 s{dst+2}, {size}\ns_mov_b32 s{dst+3}, 0x20000')
    def base(s, dst, ptr, sreg='s6'):
        s.e(f's_add_u32 s{dst}, s{ptr}, {sreg}\ns_addc_u32 s{dst+1}, s{ptr+1}, 0')
    def cap_init(s):
        if s.opt['spin_cap']: s.e('s_mov_b32 s83, 0x40000')
    def cap_check(s):
        if s.opt['spin_cap']:
            s.e('s_sub_u32 s83, s83, 1\ns_cbranch_scc1 L_end')
    def lds_wait(s, vaddr, off, n, vt, sleep=0):
        L = s.label('Lw')
        s.e(f'{L}:')
        if sleep: s.e(f's_sleep {sleep}')
        s.cap_check()
        s.e(f'ds_read_b32 v{vt}, v{vaddr} offset:{off}\ns_waitcnt lgkmcnt(0)')
        s.e(f'v_cmp_gt_u32 vcc, {n}, v{vt}\ns_cbranch_vccnz {L}')
    def tagcheck(s, regs, vacc):
        first = True
        for r in regs:
            if first:
                s.e(f'v_xor_b32 v{vacc}, s80, v{r}'); first = False
            else:
                s.e(f'v_bitop3_b32 v{vacc}, v{vacc}, v{r}, s80 bitop3:0xf6')
        s.e(f'v_and_b32 v{vacc}, 0xff, v{vacc}')
        s.e(f'v_cmp_ne_u32 vcc, 0, v{vacc}')
    def tag(s, regs, vtag):
        for r in regs: s.e(f'v_and_or_b32 v{r}, v{r}, s81, v{vtag}')
    def epoch(s):
        s.e('s_load_dword s82, s[34:35], 0')
    def epoch_done(s, vtag):
        s.e('s_waitcnt lgkmcnt(0)')
        s.e('s_add_u32 s82, s82, 1\ns_and_b32 s80, s82, 0xff\ns_mov_b32 s81, 0xffffff00')
        if vtag is not None: s.e(f'v_mov_b32 v{vtag}, s80')

def gen(fname, **opt):
    g = G(**opt); e = g.e; O = g.opt
    NT = 'nt ' if O['nt'] else ''
    g.o.append(HEADER.rstrip('\n'))
    g.o.append(f'; @launch grid=(256,1,1) block=(512,1,1) lds={LDS_BYTES}')
    g.o.append('.amdgcn_target "amdgcn-amd-amdhsa--gfx950"\n.text')
    g.o.append(f'.globl {NAME}_kernel\n.p2align 8\n.type {NAME}_kernel,@function\n{NAME}_kernel:')
    g.stamp(0)
    e('''
    s_cmp_ge_u32 s2, 256
    s_cbranch_scc1 L_end
    s_load_dwordx16 s[8:23], s[0:1], 0
    s_load_dwordx8 s[24:31], s[0:1], 64
    s_load_dwordx4 s[32:35], s[0:1], 96
    v_lshrrev_b32 v1, 6, v0
    v_and_b32 v0, 63, v0
    s_and_b32 s4, s2, 7
    v_readfirstlane_b32 s3, v1
    s_lshr_b32 s5, s2, 3
    s_lshl_b32 s64, s4, 2
    s_lshr_b32 s65, s5, 3
    s_add_u32 s64, s64, s65
    s_and_b32 s65, s5, 7
    v_lshrrev_b32 v1, 4, v0
    v_and_b32 v2, 15, v0
    ''')
    g.cap_init()
    e('''
    s_cmp_eq_u32 s3, 1
    s_cbranch_scc1 L_qprod
    s_cmp_eq_u32 s3, 2
    s_cbranch_scc1 L_attn
    s_cmp_eq_u32 s3, 3
    s_cbranch_scc1 L_ffn
    s_cmp_ge_u32 s3, 4
    s_cbranch_scc1 L_pv
    ''')
    e('''
    ; K voffs: g*256 + ((n ^ g ^ 4i)*16), i=0..3
    v_xor_b32 v3, v2, v1
    v_lshlrev_b32 v3, 4, v3
    v_lshl_add_u32 v4, v1, 8, v3
    v_xor_b32 v5, 64, v4
    v_xor_b32 v6, 0x80, v4
    v_xor_b32 v7, 0xc0, v4
    v_lshlrev_b32 v3, 1, v1
    v_xor_b32 v3, v2, v3
    v_lshlrev_b32 v3, 4, v3
    v_lshl_add_u32 v8, v1, 8, v3
    v_xor_b32 v9, 0x80, v8
    v_lshrrev_b32 v10, 3, v0
    v_and_b32 v11, 7, v0
    v_and_b32 v12, 2, v10
    v_xor_b32 v11, v11, v12
    v_lshlrev_b32 v11, 4, v11
    v_lshl_add_u32 v12, v10, 10, v11
    v_xor_b32 v13, 64, v12
    v_mul_u32_u24 v14, 3584, v10
    v_add_u32 v14, v14, v11
    v_xor_b32 v15, 64, v14
    ''')
    e(f'v_mov_b32 v16, {L_FLAG}')
    e('''
    s_lshr_b32 s6, s5, 4
    s_lshl_b32 s6, s6, 24
    s_lshl_b32 s7, s4, 21
    s_add_u32 s6, s6, s7
    s_and_b32 s7, s5, 15
    s_lshl_b32 s7, s7, 15
    s_add_u32 s6, s6, s7
    s_add_u32 s6, s6, 0x180000
    s_waitcnt lgkmcnt(0)
    ''')
    g.srd(40, 10, 32768); g.srd(44, 12, 32768)
    loads = []
    for n in range(32): loads.append((40, 4 + (n & 3), (n >> 2) * 4096, (n & 3) * 1024, L_K + (n >> 2) * 4096))
    for n in range(8): loads.append((56, 14 + (n & 1), n * 8 * 3584, 0, L_W1 + n * 1024))
    for n in range(32): loads.append((44, 8 + ((n >> 1) & 1), (n >> 2) * 4096, (n & 3) * 1024, L_V + (n >> 2) * 4096))
    for n in range(16): loads.append((48, 12 + (n & 1), n * 8192, 0, L_WO + n * 1024))
    for n in range(8): loads.append((52, 12 + (n & 1), n * 8192, 0, L_W2 + n * 1024))
    W = O['W']; W0 = O.get('W0', 8)
    N = len(loads)
    last_m0 = None; last_so = None
    marks = [32, 40, 48, 56, 64, 72, 88, 96]
    stampat = {32: 2, 72: 3, 96: 4}
    def mark(cnt):
        e(f'v_mov_b32 v17, {cnt}\nds_write_b32 v16, v17')
        if cnt in stampat: g.stamp(stampat[cnt])
    for pos, (srd, v, so, imm, m0) in enumerate(loads):
        if pos == W0:
            e('s_lshl_b32 s6, s64, 17\ns_lshl_b32 s7, s65, 7\ns_add_u32 s6, s6, s7'); g.srd(48, 16, 127 * 1024 + 128)
            e('s_mul_i32 s6, s64, 57344\ns_add_u32 s6, s6, s7'); g.srd(52, 24, 55 * 1024 + 128)
            e('s_mul_i32 s6, s65, 229376\ns_mul_i32 s7, s64, 112\ns_add_u32 s6, s6, s7'); g.srd(56, 20, 63 * 3584 + 112)
            e('s_barrier')
            g.stamp(1)
        if m0 != last_m0: e(f's_mov_b32 m0, {m0}'); last_m0 = m0
        if so != last_so: e(f's_mov_b32 s7, {so}'); last_so = so
        else: last_so = so
        e(f'buffer_load_dwordx4 v{v}, s[{srd}:{srd+3}], s7 offen offset:{imm} {NT}lds')
        if pos == W0 - 1: last_so = None
        if pos >= W - 1 and pos != N - 1:
            e(f's_waitcnt vmcnt({W-1})')
            landed = pos - (W - 1) + 1
            if marks and marks[0] == landed: mark(marks.pop(0))
    for mk in marks:
        e(f's_waitcnt vmcnt({N-mk})'); mark(mk)
    g.flush_stamps(5)
    e('s_endpgm')

    e('L_qprod:')
    e('''
    v_lshrrev_b32 v10, 3, v0
    v_and_b32 v11, 7, v0
    v_and_b32 v12, 2, v10
    v_xor_b32 v11, v11, v12
    v_lshlrev_b32 v11, 4, v11
    v_lshl_add_u32 v12, v10, 13, v11
    v_xor_b32 v13, 64, v12
    v_and_b32 v3, 1, v0
    v_lshlrev_b32 v3, 10, v3
    v_lshl_add_u32 v3, v1, 4, v3
    s_and_b32 s66, s5, 3
    s_lshr_b32 s67, s5, 2
    s_lshl_b32 s6, s66, 20
    s_lshl_b32 s7, s4, 10
    s_add_u32 s6, s6, s7
    s_lshl_b32 s7, s67, 7
    s_add_u32 s6, s6, s7
    s_lshl_b32 s68, s66, 8
    s_lshl_b32 s69, s65, 7
    s_waitcnt lgkmcnt(0)
    ''')
    g.srd(36, 14, 127 * 8192 + 128)
    g.base(40, 8, 's68'); g.base(42, 8, 's69')
    g.epoch()
    for ks in range(4): e(f'global_load_dwordx4 v[{16+4*ks}:{19+4*ks}], v3, s[40:41] offset:{ks*64}')
    for n in range(16):
        e(f's_mov_b32 m0, {L_WQ + n*1024}\ns_mov_b32 s7, {n*65536}')
        e(f'buffer_load_dwordx4 v{12+(n&1)}, s[36:39], s7 offen {NT}lds')
    for ks in range(2): e(f'global_load_dwordx4 v[{32+4*ks}:{35+4*ks}], v3, s[42:43] offset:{ks*64}')
    e('''
    s_lshr_b32 s70, s64, 4
    s_lshl_b32 s6, s70, 10
    v_lshlrev_b32 v4, 4, v0
    ''')
    g.base(44, 8, 's6')
    e('global_load_dwordx4 v[40:43], v4, s[44:45]')
    e('global_load_dwordx4 v[44:47], v4, s[28:29]')
    e('''
    s_and_b32 s71, s64, 15
    s_lshl_b32 s71, s71, 3
    s_add_u32 s71, s71, s69
    s_load_dwordx2 s[72:73], s[26:27], s71
    v_bfe_u32 v5, v0, 2, 2
    v_and_b32 v6, 3, v0
    v_lshl_add_u32 v7, v1, 3, v5
    v_lshlrev_b32 v7, 7, v7
    v_lshl_add_u32 v7, v6, 3, v7
    v_lshrrev_b32 v5, 1, v5
    v_and_b32 v6, 1, v1
    v_lshl_add_u32 v5, v6, 1, v5
    v_lshl_add_u32 v48, v5, 5, v7
    v_xor_b32 v49, 32, v48
    v_xor_b32 v50, 64, v48
    v_xor_b32 v51, 0x60, v48
    ''')
    e(f'''
    v_lshlrev_b32 v52, 16, v2
    v_lshl_add_u32 v52, v1, 4, v52
    s_lshl_b32 s6, s4, 13
    s_lshl_b32 s7, s66, 11
    s_add_u32 s6, s6, s7
    s_lshl_b32 s7, s67, 8
    s_add_u32 s6, s6, s7
    s_add_u32 s6, s6, {WS_QP}
    ''')
    g.base(46, 34, 's6')
    e(f'''
    v_lshlrev_b32 v53, 11, v2
    v_lshl_add_u32 v53, v1, 4, v53
    s_lshl_b32 s6, s64, 12
    s_lshl_b32 s7, s65, 8
    s_add_u32 s6, s6, s7
    s_add_u32 s6, s6, {WS_HP}
    ''')
    g.base(48, 34, 's6')
    e(f'v_mov_b32 v54, {L_FLAG}')
    e('s_mov_b32 s74, 0x00030003\ns_mov_b32 s75, 0x00030003')
    g.epoch_done(55)
    e('s_barrier')
    g.stamp(1)
    for ks in range(4):
        e(f's_waitcnt vmcnt({4 + 12 - 4*ks})')
        for ct in range(4):
            for t in range(2):
                e(f'ds_read_b64_tr_b16 v[{64+4*ct+2*t}:{65+4*ct+2*t}], v{48+ct} offset:{L_WQ + ks*4096 + t*512}')
        for ct in range(4):
            e(f's_waitcnt lgkmcnt({0 if O["stamps"] else 6-2*ct})')
            c = '0' if ks == 0 else f'v[{80+4*ct}:{83+4*ct}]'
            e(f'v_mfma_f32_16x16x32_bf16 v[{80+4*ct}:{83+4*ct}], v[{64+4*ct}:{67+4*ct}], v[{16+4*ks}:{19+4*ks}], {c}')
    g.stamp(2)
    e('s_mov_b64 exec, s[74:75]\ns_nop 3')
    for ct in range(4):
        g.tag(range(80 + 4*ct, 84 + 4*ct), 55)
        e(f'global_store_dwordx4 v52, v[{80+4*ct}:{83+4*ct}], s[46:47] offset:{ct*64} sc1')
    e('s_mov_b64 exec, -1')
    g.stamp(3)
    e('s_waitcnt vmcnt(4)')
    for k in range(4):
        e(f'''
        v_lshlrev_b32 v56, 16, v{40+k}
        v_and_b32 v57, 0xffff0000, v{40+k}
        v_lshlrev_b32 v58, 16, v{44+k}
        v_and_b32 v59, 0xffff0000, v{44+k}
        v_mul_f32 v56, v56, v58
        v_mul_f32 v57, v57, v59
        v_cvt_pk_bf16_f32 v56, v56, v57
        v_lshlrev_b32 v57, 16, v56
        v_and_b32 v56, 0xffff0000, v56
        v_add_f32 v57, v57, v56
        ''')
        e('v_mov_b32 v60, v57' if k == 0 else 'v_add_f32 v60, v60, v57')
    for r in (1, 2, 4, 8):
        e(f's_nop 1\nv_add_f32_dpp v60, v60, v60 row_ror:{r} row_mask:0xf bank_mask:0xf')
    e('''
    v_mov_b32 v61, v60
    s_nop 1
    v_permlane16_swap_b32 v60, v61
    v_add_f32 v60, v60, v61
    v_mov_b32 v61, v60
    s_nop 1
    v_permlane32_swap_b32 v60, v61
    v_add_f32 v60, v60, v61
    v_cvt_pk_bf16_f32 v60, v60, v60
    v_and_b32 v60, 0xffff0000, v60
    v_mul_f32 v60, 0xbfb8aa3b, v60
    v_exp_f32 v60, v60
    s_nop 0
    v_add_f32 v60, 1.0, v60
    v_rcp_f32 v60, v60
    s_nop 0
    v_cvt_pk_bf16_f32 v60, v60, v60
    v_and_b32 v60, 0xffff0000, v60
    v_sub_f32 v61, 1.0, v60
    v_cvt_pk_bf16_f32 v61, v61, v61
    v_and_b32 v61, 0xffff0000, v61
    ''')
    g.lds_wait(54, 0, 40, 56, sleep=1)
    for ks in range(2):
        for ct in range(4):
            for t in range(2):
                e(f'ds_read_b64_tr_b16 v[{64+4*ct+2*t}:{65+4*ct+2*t}], v{48+ct} offset:{L_W1 + ks*4096 + t*512}')
        e('s_waitcnt lgkmcnt(0)')
        for ct in range(4):
            c = '0' if ks == 0 else f'v[{96+4*ct}:{99+4*ct}]'
            e(f'v_mfma_f32_16x16x32_bf16 v[{96+4*ct}:{99+4*ct}], v[{64+4*ct}:{67+4*ct}], v[{32+4*ks}:{35+4*ks}], {c}')
    e('s_mov_b64 exec, s[74:75]\ns_nop 3')
    for ct in range(4):
        g.tag(range(96 + 4*ct, 100 + 4*ct), 55)
        e(f'global_store_dwordx4 v53, v[{96+4*ct}:{99+4*ct}], s[48:49] offset:{ct*64} sc1')
    e('s_mov_b64 exec, -1')
    g.stamp(4)
    if O['fp_layout'] == 'cons':
        e(f's_lshl_b32 s6, s65, 15\ns_lshl_b32 s7, s64, 10\ns_add_u32 s6, s6, s7\ns_add_u32 s6, s6, {WS_FP}')
        e('v_lshlrev_b32 v62, 4, v0')
    else:
        e(f's_lshl_b32 s6, s65, 15\ns_lshl_b32 s7, s64, 4\ns_add_u32 s6, s6, s7\ns_add_u32 s6, s6, {WS_FP}')
        e('v_lshlrev_b32 v62, 9, v0')
    g.base(50, 34, 's6')
    e('s_lshl_b32 s6, s70, 10\ns_add_u32 s6, s6, s71')
    g.base(52, 30, 's6')
    e('''
    s_mov_b32 s76, 0
    s_mov_b32 s77, -1
    v_cndmask_b32 v60, v60, v61, s[76:77]
    v_mov_b32 v68, 0
    v_mov_b32 v69, 0
    v_mov_b32 v70, 0
    v_mov_b32 v71, 0
    s_lshl_b32 s6, s72, 16
    s_and_b32 s7, s72, 0xffff0000
    s_lshl_b32 s78, s73, 16
    s_and_b32 s79, s73, 0xffff0000
    s_mov_b64 exec, s[76:77]
    v_mov_b32 v68, s6
    v_mov_b32 v69, s7
    v_mov_b32 v70, s78
    v_mov_b32 v71, s79
    s_mov_b64 exec, -1
    v_mov_b32 v63, 0
    ''')
    g.lds_wait(54, 8, 4, 56, sleep=2)
    L = g.label('Lf')
    e(f'{L}:')
    g.cap_check()
    e('global_load_dwordx4 v[64:67], v62, s[50:51] sc1\ns_waitcnt vmcnt(0)')
    g.tagcheck(range(64, 68), 56)
    e(f's_cbranch_vccnz {L}')
    g.stamp(5)
    for r in (1, 2, 4, 8):
        for k in range(4): e(f'v_add_f32_dpp v{64+k}, v{64+k}, v{64+k} row_ror:{r} row_mask:0xf bank_mask:0xf')
    for k in range(4): e(f'v_mov_b32 v{72+k}, v{64+k}')
    for k in range(4): e(f'v_permlane16_swap_b32 v{64+k}, v{72+k}')
    for k in range(4): e(f'v_add_f32 v{64+k}, v{64+k}, v{72+k}')
    def rnd4():
        e('''
        v_cvt_pk_bf16_f32 v72, v64, v65
        v_cvt_pk_bf16_f32 v73, v66, v67
        v_lshlrev_b32 v64, 16, v72
        v_and_b32 v65, 0xffff0000, v72
        v_lshlrev_b32 v66, 16, v73
        v_and_b32 v67, 0xffff0000, v73
        ''')
    rnd4()
    for k in range(4): e(f'v_add_f32 v{64+k}, v{64+k}, v{68+k}')
    rnd4()
    for k in range(4): e(f'v_mul_f32 v{64+k}, v{64+k}, v60')
    rnd4()
    for k in range(4): e(f'v_mov_b32 v{72+k}, v{64+k}')
    for k in range(4): e(f'v_permlane32_swap_b32 v{64+k}, v{72+k}')
    for k in range(4): e(f'v_add_f32 v{64+k}, v{64+k}, v{72+k}')
    e('''
    v_cvt_pk_bf16_f32 v72, v64, v65
    v_cvt_pk_bf16_f32 v73, v66, v67
    s_mov_b64 exec, 1
    global_store_dwordx2 v63, v[72:73], s[52:53]
    s_cmp_lg_u32 s2, 0
    s_cbranch_scc1 L_fin2
    v_mov_b32 v72, s82
    global_store_dword v63, v72, s[34:35] sc1
    L_fin2:
    ''')
    g.stamp(6)
    g.flush_stamps(7)
    e('s_endpgm')

    e('L_attn:')
    e(f'''
    s_lshr_b32 s66, s5, 4
    s_and_b32 s67, s5, 15
    s_lshl_b32 s6, s66, 16
    s_lshl_b32 s7, s4, 13
    s_add_u32 s6, s6, s7
    s_add_u32 s6, s6, {WS_QP + 4096}
    v_lshlrev_b32 v3, 4, v0
    v_lshrrev_b32 v4, 5, v0
    v_mul_u32_u24 v4, 320, v4
    v_and_b32 v5, 31, v0
    v_lshl_add_u32 v4, v5, 3, v4
    v_add_u32 v4, {L_Q}, v4
    v_and_b32 v5, 3, v2
    v_mul_u32_u24 v6, 320, v5
    v_lshl_add_u32 v6, v1, 4, v6
    v_add_u32 v7, {L_Q}, v6
    v_lshrrev_b32 v8, 2, v2
    v_mov_b32 v9, {L_ZERO}
    ''')
    for t in range(4):
        e(f'v_cmp_eq_u32 vcc, {t}, v8\ns_nop 1\nv_cndmask_b32 v{10+t}, v9, v7, vcc')
    e(f'''
    v_xor_b32 v14, v1, v2
    v_lshlrev_b32 v14, 4, v14
    v_lshl_add_u32 v14, v2, 8, v14
    v_xor_b32 v15, 64, v14
    v_xor_b32 v16, 0x80, v14
    v_xor_b32 v17, 0xc0, v14
    v_mul_u32_u24 v18, 320, v5
    v_lshl_add_u32 v18, v8, 5, v18
    v_lshl_add_u32 v18, v1, 3, v18
    v_add_u32 v18, {L_P}, v18
    v_mov_b32 v19, {L_FLAG}
    v_lshlrev_b32 v20, 9, v0
    s_waitcnt lgkmcnt(0)
    ''')
    g.base(40, 34, 's6')
    e(f's_lshl_b32 s6, s4, 11\ns_lshl_b32 s7, s5, 4\ns_add_u32 s6, s6, s7\ns_add_u32 s6, s6, {WS_ML}')
    g.base(42, 34, 's6')
    g.epoch()
    g.epoch_done(21)
    e('s_barrier')
    g.stamp(1)
    e(f's_sleep {O.get("qsleep", 16)}')
    L = g.label('Lq')
    e(f'{L}:')
    g.cap_check()
    for kq in range(4):
        for hf in range(2):
            r = 32 + kq * 8 + hf * 4
            e(f'global_load_dwordx4 v[{r}:{r+3}], v3, s[40:41] offset:{kq*2048 + hf*1024 - 4096} sc1')
    e('s_waitcnt vmcnt(0)')
    g.tagcheck(range(32, 64), 22)
    e(f's_cbranch_vccnz {L}')
    g.stamp(2)
    for k in range(8): e(f'v_add_f32 v{32+k}, v{32+k}, v{40+k}\nv_add_f32 v{48+k}, v{48+k}, v{56+k}')
    for k in range(8): e(f'v_add_f32 v{32+k}, v{32+k}, v{48+k}')
    for k in range(4): e(f'v_cvt_pk_bf16_f32 v{40+k}, v{32+2*k}, v{33+2*k}')
    e('ds_write_b64 v4, v[40:41]\nds_write_b64 v4, v[42:43] offset:640')
    for t in range(4):
        for ks in range(4):
            r = 64 + 16*t + 4*ks
            e(f'ds_read_b128 v[{r}:{r+3}], v{10+t} offset:{ks*64}')
    g.lds_wait(19, 0, 32, 22)
    g.stamp(3)
    def kread(T):
        for ks in range(4):
            r = 128 + 16*(T & 3) + 4*ks
            e(f'ds_read_b128 v[{r}:{r+3}], v{14+ks} offset:{L_K + T*4096}')
    kread(0); kread(1); kread(2)
    for T in range(8):
        if T + 3 < 8: kread(T + 3)
        ahead = min(3, 7 - T)
        e(f's_waitcnt lgkmcnt({0 if O["stamps"] else 4*ahead})')
        D = 24 + 4*(T >> 2); t = T & 3
        for ks in range(4):
            a = 128 + 16*(T & 3) + 4*ks; b = 64 + 16*t + 4*ks
            c = '0' if (t == 0 and ks == 0) else f'v[{D}:{D+3}]'
            e(f'v_mfma_f32_16x16x32_bf16 v[{D}:{D+3}], v[{a}:{a+3}], v[{b}:{b+3}], {c}')
    e('s_mov_b32 s68, 0x3db504f3\ns_mov_b32 s69, 0x3fb8aa3b\ns_nop 5')
    def rnd8():
        for k in range(4): e(f'v_cvt_pk_bf16_f32 v{32+k}, v{24+2*k}, v{25+2*k}')
        for k in range(4): e(f'v_lshlrev_b32 v{24+2*k}, 16, v{32+k}\nv_and_b32 v{25+2*k}, 0xffff0000, v{32+k}')
    rnd8()
    for k in range(8): e(f'v_mul_f32 v{24+k}, s68, v{24+k}')
    rnd8()
    e('''
    v_max3_f32 v36, v24, v25, v26
    v_max3_f32 v37, v27, v28, v29
    v_max3_f32 v36, v36, v30, v31
    v_max_f32 v36, v36, v37
    s_nop 1
    v_max_f32_dpp v36, v36, v36 row_ror:4 row_mask:0xf bank_mask:0xf
    s_nop 1
    v_max_f32_dpp v36, v36, v36 row_ror:8 row_mask:0xf bank_mask:0xf
    v_mov_b32 v37, v36
    s_nop 1
    v_permlane16_swap_b32 v36, v37
    v_max_f32 v36, v36, v37
    v_mov_b32 v37, v36
    s_nop 1
    v_permlane32_swap_b32 v36, v37
    v_max_f32 v36, v36, v37
    ''')
    for k in range(8): e(f'v_sub_f32 v{24+k}, v{24+k}, v36')
    for k in range(8): e(f'v_mul_f32 v{24+k}, s69, v{24+k}')
    for k in range(8): e(f'v_exp_f32 v{24+k}, v{24+k}')
    e('s_nop 0')
    for k in range(4): e(f'v_cvt_pk_bf16_f32 v{32+k}, v{24+2*k}, v{25+2*k}')
    e('''
    v_mov_b32 v22, 1
    ds_write_b64 v18, v[32:33]
    ds_write_b64 v18, v[34:35] offset:128
    ds_write_b32 v19, v22 offset:4
    v_add_f32 v24, v24, v25
    v_add_f32 v26, v26, v27
    v_add_f32 v28, v28, v29
    v_add_f32 v30, v30, v31
    v_add_f32 v24, v24, v26
    v_add_f32 v28, v28, v30
    v_add_f32 v37, v24, v28
    s_nop 1
    v_add_f32_dpp v37, v37, v37 row_ror:4 row_mask:0xf bank_mask:0xf
    s_nop 1
    v_add_f32_dpp v37, v37, v37 row_ror:8 row_mask:0xf bank_mask:0xf
    v_mov_b32 v38, v37
    s_nop 1
    v_permlane16_swap_b32 v37, v38
    v_add_f32 v37, v37, v38
    v_mov_b32 v38, v37
    s_nop 1
    v_permlane32_swap_b32 v37, v38
    v_add_f32 v37, v37, v38
    v_mov_b32 v38, v36
    v_mov_b32 v39, v37
    ''')
    g.tag(range(36, 40), 21)
    e('s_mov_b64 exec, 0xf\nglobal_store_dwordx4 v20, v[36:39], s[42:43] sc1')
    g.stamp(4)
    g.flush_stamps(5)
    e('s_endpgm')

    e('L_ffn:')
    e(f'''
    v_mov_b32 v4, 0
    v_mov_b32 v5, 0
    v_lshlrev_b32 v3, 3, v0
    v_add_u32 v3, {L_ZERO}, v3
    ds_write_b64 v3, v[4:5]
    v_and_b32 v6, 1, v1
    v_lshlrev_b32 v7, 11, v6
    v_lshl_add_u32 v7, v2, 4, v7
    v_min_u32 v8, 13, v2
    v_lshlrev_b32 v8, 3, v8
    v_mul_u32_u24 v9, 160, v6
    v_lshl_add_u32 v9, v2, 3, v9
    v_add_u32 v9, {L_ACTH}, v9
    v_and_b32 v10, 1, v2
    v_mul_u32_u24 v10, 160, v10
    v_lshl_add_u32 v10, v1, 4, v10
    v_add_u32 v10, {L_ACTH}, v10
    v_bfe_u32 v11, v0, 2, 2
    v_and_b32 v12, 3, v0
    v_lshl_add_u32 v13, v1, 3, v11
    v_lshlrev_b32 v13, 7, v13
    v_lshl_add_u32 v13, v12, 3, v13
    v_lshrrev_b32 v11, 1, v11
    v_lshl_add_u32 v11, v6, 1, v11
    v_lshl_add_u32 v16, v11, 5, v13
    v_add_u32 v16, {L_W2}, v16
    v_xor_b32 v17, 32, v16
    v_xor_b32 v18, 64, v16
    v_xor_b32 v19, 0x60, v16
    v_mov_b32 v20, {L_FLAG}
    s_lshl_b32 s6, s64, 12
    s_add_u32 s6, s6, {WS_HP}
    s_mul_i32 s7, s64, 112
    s_waitcnt lgkmcnt(0)
    ''')
    g.base(40, 34, 's6'); g.base(42, 22, 's7')
    g.epoch()
    e('global_load_dwordx2 v[22:23], v8, s[42:43]')
    if O['fp_layout'] == 'cons':
        e(f's_lshl_b32 s6, s65, 15\ns_lshl_b32 s7, s64, 4\ns_add_u32 s6, s6, s7\ns_add_u32 s6, s6, {WS_FP + 512}')
        e('v_lshlrev_b32 v24, 14, v2\nv_lshl_add_u32 v24, v1, 10, v24')
        ctstride = 4096
    else:
        e(f's_lshl_b32 s6, s65, 15\ns_lshl_b32 s7, s64, 9\ns_add_u32 s6, s6, s7\ns_add_u32 s6, s6, {WS_FP + 16384}')
        e('v_lshlrev_b32 v24, 8, v2\nv_lshl_add_u32 v24, v1, 4, v24')
        ctstride = 64
    g.base(44, 34, 's6')
    for ct in range(1, 4): e(f'v_add_u32 v{24+ct}, {ct*ctstride}, v24')
    e('s_mov_b32 s74, 0x00030003\ns_mov_b32 s75, 0x00030003')
    e('s_mov_b32 s76, 0x3fff3fff\ns_mov_b32 s77, 0')
    g.epoch_done(21)
    e('s_barrier')
    g.stamp(1)
    g.lds_wait(20, 0, O.get('hp_after', 56), 28, sleep=4)
    e('s_mov_b64 exec, s[76:77]')
    L = g.label('Lh')
    e(f'{L}:')
    g.cap_check()
    for j in range(8): e(f'global_load_dwordx4 v[{32+4*j}:{35+4*j}], v7, s[40:41] offset:{j*256} sc1')
    e('s_waitcnt vmcnt(0)')
    g.tagcheck(range(32, 64), 28)
    e(f's_cbranch_vccnz {L}')
    g.stamp(2)
    for k in range(16): e(f'v_add_f32 v{32+k}, v{32+k}, v{48+k}')
    for k in range(8): e(f'v_add_f32 v{32+k}, v{32+k}, v{40+k}')
    for k in range(4): e(f'v_add_f32 v{32+k}, v{32+k}, v{36+k}')
    def r4():
        e('''
        v_cvt_pk_bf16_f32 v36, v32, v33
        v_cvt_pk_bf16_f32 v37, v34, v35
        v_lshlrev_b32 v32, 16, v36
        v_and_b32 v33, 0xffff0000, v36
        v_lshlrev_b32 v34, 16, v37
        v_and_b32 v35, 0xffff0000, v37
        ''')
    r4()
    e('''
    v_lshlrev_b32 v40, 16, v22
    v_and_b32 v41, 0xffff0000, v22
    v_lshlrev_b32 v42, 16, v23
    v_and_b32 v43, 0xffff0000, v23
    ''')
    for k in range(4): e(f'v_add_f32 v{32+k}, v{32+k}, v{40+k}')
    r4()
    import math, struct
    c1 = struct.unpack('<I', struct.pack('<f', 0.044715))[0]
    c2 = struct.unpack('<I', struct.pack('<f', -2.0 * math.log2(math.e) * math.sqrt(2.0 / math.pi)))[0]
    e(f's_mov_b32 s68, {c1:#x}\ns_mov_b32 s69, {c2:#x}')
    for k in range(4): e(f'v_mul_f32 v{40+k}, v{32+k}, v{32+k}')
    for k in range(4): e(f'v_fma_f32 v{40+k}, v{40+k}, s68, 1.0')
    for k in range(4): e(f'v_mul_f32 v{40+k}, v{40+k}, v{32+k}')
    for k in range(4): e(f'v_mul_f32 v{40+k}, s69, v{40+k}')
    for k in range(4): e(f'v_exp_f32 v{40+k}, v{40+k}')
    for k in range(4): e(f'v_add_f32 v{40+k}, 1.0, v{40+k}')
    for k in range(4): e(f'v_rcp_f32 v{40+k}, v{40+k}')
    for k in range(4): e(f'v_mul_f32 v{32+k}, v{32+k}, v{40+k}')
    e('''
    v_cvt_pk_bf16_f32 v4, v32, v33
    v_cvt_pk_bf16_f32 v5, v34, v35
    s_mov_b32 exec_lo, -1
    ds_write_b64 v9, v[4:5]
    s_mov_b64 exec, -1
    ds_read_b128 v[44:47], v10
    ds_read_b128 v[48:51], v10 offset:64
    ''')
    g.lds_wait(20, 0, 96, 28)
    g.stamp(3)
    for ks in range(2):
        for ct in range(4):
            for t in range(2):
                r = 64 + 16*ks + 4*ct + 2*t
                e(f'ds_read_b64_tr_b16 v[{r}:{r+1}], v{16+ct} offset:{ks*4096 + t*512}')
    for ks in range(2):
        e(f's_waitcnt lgkmcnt({0 if (O["stamps"] or ks) else 8})')
        for ct in range(4):
            r = 64 + 16*ks + 4*ct
            c = '0' if ks == 0 else f'v[{96+4*ct}:{99+4*ct}]'
            e(f'v_mfma_f32_16x16x32_bf16 v[{96+4*ct}:{99+4*ct}], v[{r}:{r+3}], v[{44+4*ks}:{47+4*ks}], {c}')
    e('s_mov_b64 exec, s[74:75]\ns_nop 3')
    for ct in range(4):
        g.tag(range(96 + 4*ct, 100 + 4*ct), 21)
        e(f'global_store_dwordx4 v{24+ct}, v[{96+4*ct}:{99+4*ct}], s[44:45] sc1')
    g.stamp(4)
    g.flush_stamps(5)
    e('s_endpgm')

    e('L_pv:')
    e(f'''
    s_sub_u32 s66, s3, 4
    v_and_b32 v5, 3, v2
    v_mul_u32_u24 v6, 320, v5
    v_lshl_add_u32 v6, v1, 4, v6
    v_add_u32 v7, {L_P}, v6
    v_lshrrev_b32 v8, 2, v2
    v_mov_b32 v9, {L_ZERO}
    v_cmp_eq_u32 vcc, 0, v8
    s_nop 1
    v_cndmask_b32 v10, v9, v7, vcc
    v_cmp_eq_u32 vcc, 1, v8
    s_nop 1
    v_cndmask_b32 v11, v9, v7, vcc
    v_bfe_u32 v12, v0, 2, 2
    v_and_b32 v13, 3, v0
    v_lshl_add_u32 v14, v1, 3, v12
    v_and_b32 v15, 1, v1
    v_lshl_add_u32 v16, v15, 2, v12
    s_lshl_b32 s6, s66, 1
    v_xor_b32 v16, s6, v16
    v_lshlrev_b32 v16, 5, v16
    v_lshl_add_u32 v16, v14, 8, v16
    v_lshl_add_u32 v16, v13, 3, v16
    v_add_u32 v16, {L_V}, v16
    v_xor_b32 v17, 32, v16
    v_lshrrev_b32 v18, 1, v12
    v_lshl_add_u32 v18, v15, 1, v18
    v_xor_b32 v18, s66, v18
    v_lshlrev_b32 v18, 5, v18
    v_lshl_add_u32 v18, v14, 7, v18
    v_lshl_add_u32 v18, v13, 3, v18
    v_add_u32 v18, {L_WO}, v18
    v_mov_b32 v19, {L_FLAG}
    v_lshlrev_b32 v20, 14, v5
    v_lshl_add_u32 v20, v8, 6, v20
    v_lshl_add_u32 v20, v1, 4, v20
    v_lshlrev_b32 v22, 4, v0
    v_lshlrev_b32 v23, 4, v2
    v_lshrrev_b32 v24, 5, v0
    v_add_u32 v25, s6, v24
    v_mul_u32_u24 v25, 288, v25
    v_and_b32 v26, 31, v0
    v_lshl_add_u32 v25, v26, 3, v25
    v_add_u32 v25, {L_ACT}, v25
    v_and_b32 v26, 7, v2
    v_mul_u32_u24 v26, 288, v26
    v_lshl_add_u32 v26, v1, 4, v26
    v_add_u32 v26, {L_ACT}, v26
    s_and_b32 s7, s66, 1
    s_lshl_b32 s7, s7, 3
    v_add_u32 v27, s7, v24
    v_lshlrev_b32 v27, 2, v27
    s_lshl_b32 s6, s4, 16
    s_lshl_b32 s7, s5, 9
    s_add_u32 s6, s6, s7
    s_lshl_b32 s7, s66, 7
    s_add_u32 s6, s6, s7
    s_add_u32 s6, s6, {WS_OP}
    s_waitcnt lgkmcnt(0)
    ''')
    g.base(40, 34, 's6')
    g.epoch()
    e(f's_lshl_b32 s6, s64, 14\ns_lshl_b32 s7, s66, 12\ns_add_u32 s6, s6, s7\ns_add_u32 s6, s6, {WS_OP}')
    g.base(42, 34, 's6')
    e(f's_lshl_b32 s6, s64, 9\ns_lshr_b32 s7, s66, 1\ns_lshl_b32 s7, s7, 8\ns_add_u32 s6, s6, s7\ns_add_u32 s6, s6, {WS_ML}')
    g.base(44, 34, 's6')
    if O['fp_layout'] == 'cons':
        e(f's_lshl_b32 s6, s65, 15\ns_lshl_b32 s7, s64, 4\ns_add_u32 s6, s6, s7\ns_lshl_b32 s7, s66, 12\ns_add_u32 s6, s6, s7\ns_add_u32 s6, s6, {WS_FP}')
        e('v_lshlrev_b32 v28, 14, v8\nv_lshl_add_u32 v28, v1, 10, v28')
    else:
        e(f's_lshl_b32 s6, s65, 15\ns_lshl_b32 s7, s64, 9\ns_add_u32 s6, s6, s7\ns_lshl_b32 s7, s66, 6\ns_add_u32 s6, s6, s7\ns_add_u32 s6, s6, {WS_FP}')
        e('v_lshlrev_b32 v28, 8, v8\nv_lshl_add_u32 v28, v1, 4, v28')
    g.base(46, 34, 's6')
    e('s_mov_b32 s74, 0x00ff00ff\ns_mov_b32 s75, 0x00ff00ff')
    e('s_mov_b32 s76, 0x00110011\ns_mov_b32 s77, 0x00110011')
    e('s_mov_b32 s69, 0x3fb8aa3b')
    g.epoch_done(21)
    e('s_barrier')
    g.stamp(1)
    g.lds_wait(19, 4, 1, 29, sleep=2)
    for ee in range(2):
        for ks in range(4):
            r = 32 + 16*ee + 4*ks
            e(f'ds_read_b128 v[{r}:{r+3}], v{10+ee} offset:{ks*64}')
    g.stamp(2)
    for ks in range(4):
        g.lds_wait(19, 0, 48 + 8*ks, 29)
        for ee in range(2):
            for t in range(2):
                r = 64 + 4*ee + 2*t
                e(f'ds_read_b64_tr_b16 v[{r}:{r+1}], v{16+ee} offset:{ks*8192 + t*1024}')
        for ee in range(2):
            e(f's_waitcnt lgkmcnt({0 if (O["stamps"] or ee) else 2})')
            c = '0' if (ks == 0 and ee == 0) else 'v[72:75]'
            e(f'v_mfma_f32_16x16x32_bf16 v[72:75], v[{64+4*ee}:{67+4*ee}], v[{32+16*ee+4*ks}:{35+16*ee+4*ks}], {c}')
    e('s_mov_b64 exec, s[74:75]\ns_nop 6')
    g.tag(range(72, 76), 21)
    e('global_store_dwordx4 v20, v[72:75], s[40:41] sc1')
    e('s_mov_b64 exec, -1')
    g.stamp(3)
    L = g.label('Lm')
    e(f'{L}:')
    g.cap_check()
    e('global_load_dwordx4 v[32:35], v23, s[44:45] sc1\ns_waitcnt vmcnt(0)')
    g.tagcheck(range(32, 36), 29)
    e(f's_cbranch_vccnz {L}')
    e('v_and_b32 v32, 0xffff0000, v32\nv_mov_b32 v34, v32')
    for r in (1, 2, 4, 8): e(f's_nop 1\nv_max_f32_dpp v34, v34, v34 row_ror:{r} row_mask:0xf bank_mask:0xf')
    e('''
    v_sub_f32 v32, v32, v34
    v_mul_f32 v32, s69, v32
    v_exp_f32 v32, v32
    s_nop 0
    v_mul_f32 v33, v33, v32
    ''')
    for r in (1, 2, 4, 8): e(f's_nop 1\nv_add_f32_dpp v33, v33, v33 row_ror:{r} row_mask:0xf bank_mask:0xf')
    e('v_rcp_f32 v33, v33\ns_nop 0\nv_mul_f32 v32, v32, v33')
    for k in range(4): e(f'ds_bpermute_b32 v{36+k}, v27, v32 offset:{8*k}')
    g.lds_wait(19, 0, 88, 29)
    for ks in range(4):
        for t in range(2):
            r = 80 + 4*ks + 2*t
            e(f'ds_read_b64_tr_b16 v[{r}:{r+1}], v18 offset:{ks*4096 + t*512}')
    g.stamp(4)
    L = g.label('Lo')
    e(f'{L}:')
    g.cap_check()
    for k in range(4): e(f'global_load_dwordx4 v[{40+4*k}:{43+4*k}], v22, s[42:43] offset:{k*1024} sc1')
    e('s_waitcnt vmcnt(0)')
    g.tagcheck(range(40, 56), 29)
    e(f's_cbranch_vccnz {L}')
    g.stamp(5)
    e('s_waitcnt lgkmcnt(0)')
    for i in range(4): e(f'v_mul_f32 v{56+i}, v36, v{40+i}')
    for k in range(1, 4):
        for i in range(4): e(f'v_fmac_f32 v{56+i}, v{36+k}, v{40+4*k+i}')
    e('''
    v_cvt_pk_bf16_f32 v60, v56, v57
    v_cvt_pk_bf16_f32 v61, v58, v59
    v_mov_b32 v62, 1
    ds_write_b64 v25, v[60:61]
    s_mov_b64 exec, 1
    ds_add_u32 v19, v62 offset:8
    s_mov_b64 exec, -1
    ''')
    g.lds_wait(19, 8, 4, 29)
    for ks in range(4): e(f'ds_read_b128 v[{40+4*ks}:{43+4*ks}], v26 offset:{ks*64}')
    for ks in range(4):
        e(f's_waitcnt lgkmcnt({0 if O["stamps"] else 3-ks})')
        c = '0' if ks == 0 else 'v[72:75]'
        e(f'v_mfma_f32_16x16x32_bf16 v[72:75], v[{80+4*ks}:{83+4*ks}], v[{40+4*ks}:{43+4*ks}], {c}')
    e('s_nop 7')
    for qp in ('[1,0,3,2]', '[2,3,0,1]'):
        for i in range(4): e(f'v_add_f32_dpp v{72+i}, v{72+i}, v{72+i} quad_perm:{qp} row_mask:0xf bank_mask:0xf')
    e('s_mov_b64 exec, s[76:77]')
    g.tag(range(72, 76), 21)
    e('global_store_dwordx4 v28, v[72:75], s[46:47] sc1')
    g.stamp(6)
    g.flush_stamps(7)
    e('L_end:\ns_endpgm')
    g.o.append(f'''.section .rodata,"a"
.p2align 6
.amdhsa_kernel {NAME}_kernel
  .amdhsa_next_free_vgpr 256
  .amdhsa_next_free_sgpr 102
  .amdhsa_accum_offset 256
  .amdhsa_group_segment_fixed_size 0
  .amdhsa_kernarg_size 112
  .amdhsa_user_sgpr_count 2
  .amdhsa_user_sgpr_kernarg_segment_ptr 1
  .amdhsa_system_sgpr_workgroup_id_x 1
.end_amdhsa_kernel''')
    open(fname, 'w').write('\n'.join(g.o) + '\n')

if __name__ == '__main__':
    gen('k_nt.s', nt=True)
    gen('k_def.s', nt=False)
    gen('k_nt_st.s', nt=True, stamps=True)
    gen('k_def_st.s', nt=False, stamps=True)
```

```python
import sys
NAME = 'gated_mix__sliding_block_cached__dense_activation_gelu__decode'

HEADER = open('cdna_kernels/%s.s.ref' % NAME).read().split('; Override launch')[0]

WS_QP = 0x10000
WS_HP = 0x30000
WS_ML = 0x50000
WS_OP = 0x80000
WS_FP = 0x100000
WS_STAMP = 0x8000000
L_WQ = 0x0000
L_K = 0x4000
L_W1 = 0xC000
L_V = 0xE000
L_WO = 0x16000
L_W2 = 0x1A000
L_MISC = 0x1C000
L_Q = L_MISC
L_P = L_MISC + 0x500
L_ZERO = L_MISC + 0xA00
L_FLAG = L_MISC + 0xB00
L_ACTH = L_MISC + 0xC00
L_ACT = L_MISC + 0x1000
LDS_BYTES = L_MISC + 0x1A00

class G:
    def __init__(s, **opt):
        s.o = []
        s.opt = dict(W=24, nt=True, stamps=False, fp_layout='cons', spin_cap=True)
        s.opt.update(opt)
        s.lab = 0
    def e(s, txt):
        for line in txt.strip('\n').split('\n'):
            s.o.append('    ' + line.strip() if not line.strip().endswith(':') else line.strip())
    def label(s, p='L'):
        s.lab += 1
        return f'{p}_{s.lab}'
    def stamp(s, k):
        if s.opt['stamps']:
            s.e(f's_memrealtime s[{84+2*k}:{85+2*k}]')
    def flush_stamps(s, n, dbg=None):
        if not s.opt['stamps']: return
        s.e('s_mov_b64 exec, -1')
        s.e('s_waitcnt lgkmcnt(0)')
        if s.opt.get('dbgtime'):
            s.e('s_mov_b64 exec, 1\nv_mov_b32 v251, 0')
            for k, slot in (dbg or {}).items():
                if k == 0: s.e('s_not_b32 s84, s84')
                s.e(f'v_mov_b32 v250, s{84+2*k}')
                s.e(f'global_atomic_umax v251, v250, s[32:33] offset:{4*slot}')
            return
        s.e('v_mov_b32 v250, 0')
        for k in range(n): s.e(f'v_writelane_b32 v250, s{84+2*k}, {k}')
        s.e(f's_lshl_b32 s6, s2, 8\ns_lshl_b32 s7, s3, 5\ns_add_u32 s6, s6, s7\ns_add_u32 s6, s6, {WS_STAMP}')
        s.e('s_add_u32 s6, s34, s6\ns_addc_u32 s7, s35, 0')
        s.e('v_lshlrev_b32 v251, 2, v0')
        s.e('s_mov_b64 exec, 0xff')
        s.e('global_store_dword v251, v250, s[6:7]')
    def srd(s, dst, ptr, size):
        s.e(f's_add_u32 s{dst}, s{ptr}, s6\ns_addc_u32 s{dst+1}, s{ptr+1}, 0\ns_mov_b32 s{dst+2}, {size}\ns_mov_b32 s{dst+3}, 0x20000')
    def base(s, dst, ptr, sreg='s6'):
        s.e(f's_add_u32 s{dst}, s{ptr}, {sreg}\ns_addc_u32 s{dst+1}, s{ptr+1}, 0')
    def cap_init(s):
        if s.opt['spin_cap']: s.e('s_mov_b32 s83, 0x40000')
    def cap_check(s):
        if s.opt['spin_cap']:
            s.e('s_sub_u32 s83, s83, 1\ns_cbranch_scc1 L_end')
    def lds_wait(s, vaddr, off, n, vt, sleep=0):
        L = s.label('Lw')
        s.e(f'{L}:')
        if sleep: s.e(f's_sleep {sleep}')
        s.cap_check()
        s.e(f'ds_read_b32 v{vt}, v{vaddr} offset:{off}\ns_waitcnt lgkmcnt(0)')
        s.e(f'v_cmp_gt_u32 vcc, {n}, v{vt}\ns_cbranch_vccnz {L}')
    def tagcheck(s, regs, vacc):
        first = True
        for r in regs:
            if first:
                s.e(f'v_xor_b32 v{vacc}, s80, v{r}'); first = False
            else:
                s.e(f'v_bitop3_b32 v{vacc}, v{vacc}, v{r}, s80 bitop3:0xf6')
        s.e(f'v_and_b32 v{vacc}, 0xff, v{vacc}')
        s.e(f'v_cmp_ne_u32 vcc, 0, v{vacc}')
    def tag(s, regs, vtag):
        for r in regs: s.e(f'v_and_or_b32 v{r}, v{r}, s81, v{vtag}')
    def epoch(s):
        s.e('s_load_dword s82, s[34:35], 0')
    def epoch_done(s, vtag):
        s.e('s_waitcnt lgkmcnt(0)')
        s.e('s_add_u32 s82, s82, 1\ns_and_b32 s80, s82, 0xff\ns_mov_b32 s81, 0xffffff00')
        if vtag is not None: s.e(f'v_mov_b32 v{vtag}, s80')

def gen(fname, **opt):
    g = G(**opt); e = g.e; O = g.opt
    NT = 'nt ' if O['nt'] else ''
    g.o.append(HEADER.rstrip('\n'))
    g.o.append(f'; @launch grid=(256,1,1) block=(512,1,1) lds={LDS_BYTES}')
    g.o.append('.amdgcn_target "amdgcn-amd-amdhsa--gfx950"\n.text')
    g.o.append(f'.globl {NAME}_kernel\n.p2align 8\n.type {NAME}_kernel,@function\n{NAME}_kernel:')
    g.stamp(0)
    e('''
    s_cmp_ge_u32 s2, 256
    s_cbranch_scc1 L_end
    s_load_dwordx16 s[8:23], s[0:1], 0
    s_load_dwordx8 s[24:31], s[0:1], 64
    s_load_dwordx4 s[32:35], s[0:1], 96
    v_lshrrev_b32 v1, 6, v0
    v_and_b32 v0, 63, v0
    s_and_b32 s4, s2, 7
    v_readfirstlane_b32 s3, v1
    s_lshr_b32 s5, s2, 3
    s_lshl_b32 s64, s4, 2
    s_lshr_b32 s65, s5, 3
    s_add_u32 s64, s64, s65
    s_and_b32 s65, s5, 7
    v_lshrrev_b32 v1, 4, v0
    v_and_b32 v2, 15, v0
    ''')
    g.cap_init()
    e('''
    s_cmp_eq_u32 s3, 1
    s_cbranch_scc1 L_qprod
    s_cmp_eq_u32 s3, 2
    s_cbranch_scc1 L_attn
    s_cmp_eq_u32 s3, 3
    s_cbranch_scc1 L_ffn
    s_cmp_ge_u32 s3, 4
    s_cbranch_scc1 L_pv
    ''')
    e('''
    ; K voffs: g*256 + ((n ^ g ^ 4i)*16), i=0..3
    v_xor_b32 v3, v2, v1
    v_lshlrev_b32 v3, 4, v3
    v_lshl_add_u32 v4, v1, 8, v3
    v_xor_b32 v5, 64, v4
    v_xor_b32 v6, 0x80, v4
    v_xor_b32 v7, 0xc0, v4
    v_lshlrev_b32 v3, 1, v1
    v_xor_b32 v3, v2, v3
    v_lshlrev_b32 v3, 4, v3
    v_lshl_add_u32 v8, v1, 8, v3
    v_xor_b32 v9, 0x80, v8
    v_lshrrev_b32 v10, 3, v0
    v_and_b32 v11, 7, v0
    v_and_b32 v12, 2, v10
    v_xor_b32 v11, v11, v12
    v_lshlrev_b32 v11, 4, v11
    v_lshl_add_u32 v12, v10, 10, v11
    v_xor_b32 v13, 64, v12
    v_mul_u32_u24 v14, 3584, v10
    v_add_u32 v14, v14, v11
    v_xor_b32 v15, 64, v14
    ''')
    e(f'v_mov_b32 v16, {L_FLAG}')
    e('''
    s_lshr_b32 s6, s5, 4
    s_lshl_b32 s6, s6, 24
    s_lshl_b32 s7, s4, 21
    s_add_u32 s6, s6, s7
    s_and_b32 s7, s5, 15
    s_lshl_b32 s7, s7, 15
    s_add_u32 s6, s6, s7
    s_add_u32 s6, s6, 0x180000
    s_waitcnt lgkmcnt(0)
    ''')
    g.srd(40, 10, 32768); g.srd(44, 12, 32768)
    loads = []
    for n in range(32): loads.append((40, 4 + (n & 3), (n >> 2) * 4096, (n & 3) * 1024, L_K + (n >> 2) * 4096))
    for n in range(8): loads.append((56, 14 + (n & 1), n * 8 * 3584, 0, L_W1 + n * 1024))
    for n in range(32): loads.append((44, 8 + ((n >> 1) & 1), (n >> 2) * 4096, (n & 3) * 1024, L_V + (n >> 2) * 4096))
    for n in range(16): loads.append((48, 12 + (n & 1), n * 8192, 0, L_WO + n * 1024))
    for n in range(8): loads.append((52, 12 + (n & 1), n * 8192, 0, L_W2 + n * 1024))
    W = O['W']; W0 = O.get('W0', 8)
    N = len(loads)
    last_m0 = None; last_so = None
    marks = [32, 40, 48, 56, 64, 72, 88, 96]
    stampat = {32: 2, 72: 3, 96: 4}
    def mark(cnt):
        e(f'v_mov_b32 v17, {cnt}\nds_write_b32 v16, v17')
        if cnt in stampat: g.stamp(stampat[cnt])
    for pos, (srd, v, so, imm, m0) in enumerate(loads):
        if pos == W0:
            e('s_lshl_b32 s6, s64, 17\ns_lshl_b32 s7, s65, 7\ns_add_u32 s6, s6, s7'); g.srd(48, 16, 127 * 1024 + 128)
            e('s_mul_i32 s6, s64, 57344\ns_add_u32 s6, s6, s7'); g.srd(52, 24, 55 * 1024 + 128)
            e('s_mul_i32 s6, s65, 229376\ns_mul_i32 s7, s64, 112\ns_add_u32 s6, s6, s7'); g.srd(56, 20, 63 * 3584 + 112)
            e('s_barrier')
            g.stamp(1)
        if m0 != last_m0: e(f's_mov_b32 m0, {m0}'); last_m0 = m0
        if so != last_so: e(f's_mov_b32 s7, {so}'); last_so = so
        else: last_so = so
        e(f'buffer_load_dwordx4 v{v}, s[{srd}:{srd+3}], s7 offen offset:{imm} {NT}lds')
        if pos == W0 - 1: last_so = None
        if pos >= W - 1 and pos != N - 1:
            e(f's_waitcnt vmcnt({W-1})')
            landed = pos - (W - 1) + 1
            if marks and marks[0] == landed: mark(marks.pop(0))
    for mk in marks:
        e(f's_waitcnt vmcnt({N-mk})'); mark(mk)
    g.flush_stamps(5, {0:0, 1:1, 2:2, 3:3, 4:4})
    e('s_endpgm')

    e('L_qprod:')
    e('''
    v_lshrrev_b32 v10, 3, v0
    v_and_b32 v11, 7, v0
    v_and_b32 v12, 2, v10
    v_xor_b32 v11, v11, v12
    v_lshlrev_b32 v11, 4, v11
    v_lshl_add_u32 v12, v10, 13, v11
    v_xor_b32 v13, 64, v12
    v_and_b32 v3, 1, v0
    v_lshlrev_b32 v3, 10, v3
    v_lshl_add_u32 v3, v1, 4, v3
    s_and_b32 s66, s5, 3
    s_lshr_b32 s67, s5, 2
    s_lshl_b32 s6, s66, 20
    s_lshl_b32 s7, s4, 10
    s_add_u32 s6, s6, s7
    s_lshl_b32 s7, s67, 7
    s_add_u32 s6, s6, s7
    s_lshl_b32 s68, s66, 8
    s_lshl_b32 s69, s65, 7
    s_waitcnt lgkmcnt(0)
    ''')
    g.srd(36, 14, 127 * 8192 + 128)
    g.base(40, 8, 's68'); g.base(42, 8, 's69')
    g.epoch()
    for ks in range(4): e(f'global_load_dwordx4 v[{16+4*ks}:{19+4*ks}], v3, s[40:41] offset:{ks*64}')
    for n in range(16):
        e(f's_mov_b32 m0, {L_WQ + n*1024}\ns_mov_b32 s7, {n*65536}')
        e(f'buffer_load_dwordx4 v{12+(n&1)}, s[36:39], s7 offen {NT}lds')
    for ks in range(2): e(f'global_load_dwordx4 v[{32+4*ks}:{35+4*ks}], v3, s[42:43] offset:{ks*64}')
    e('''
    s_lshr_b32 s70, s64, 4
    s_lshl_b32 s6, s70, 10
    v_lshlrev_b32 v4, 4, v0
    ''')
    g.base(44, 8, 's6')
    e('global_load_dwordx4 v[40:43], v4, s[44:45]')
    e('global_load_dwordx4 v[44:47], v4, s[28:29]')
    e('''
    s_and_b32 s71, s64, 15
    s_lshl_b32 s71, s71, 3
    s_add_u32 s71, s71, s69
    s_load_dwordx2 s[72:73], s[26:27], s71
    v_bfe_u32 v5, v0, 2, 2
    v_and_b32 v6, 3, v0
    v_lshl_add_u32 v7, v1, 3, v5
    v_lshlrev_b32 v7, 7, v7
    v_lshl_add_u32 v7, v6, 3, v7
    v_lshrrev_b32 v5, 1, v5
    v_and_b32 v6, 1, v1
    v_lshl_add_u32 v5, v6, 1, v5
    v_lshl_add_u32 v48, v5, 5, v7
    v_xor_b32 v49, 32, v48
    v_xor_b32 v50, 64, v48
    v_xor_b32 v51, 0x60, v48
    ''')
    e(f'''
    v_lshlrev_b32 v52, 16, v2
    v_lshl_add_u32 v52, v1, 4, v52
    s_lshl_b32 s6, s4, 13
    s_lshl_b32 s7, s66, 11
    s_add_u32 s6, s6, s7
    s_lshl_b32 s7, s67, 8
    s_add_u32 s6, s6, s7
    s_add_u32 s6, s6, {WS_QP}
    ''')
    g.base(46, 34, 's6')
    e(f'''
    v_lshlrev_b32 v53, 11, v2
    v_lshl_add_u32 v53, v1, 4, v53
    s_lshl_b32 s6, s64, 12
    s_lshl_b32 s7, s65, 8
    s_add_u32 s6, s6, s7
    s_add_u32 s6, s6, {WS_HP}
    ''')
    g.base(48, 34, 's6')
    e(f'v_mov_b32 v54, {L_FLAG}')
    e('s_mov_b32 s74, 0x00030003\ns_mov_b32 s75, 0x00030003')
    g.epoch_done(55)
    e('s_barrier')
    g.stamp(1)
    for ks in range(4):
        e(f's_waitcnt vmcnt({4 + 12 - 4*ks})')
        for ct in range(4):
            for t in range(2):
                e(f'ds_read_b64_tr_b16 v[{64+4*ct+2*t}:{65+4*ct+2*t}], v{48+ct} offset:{L_WQ + ks*4096 + t*512}')
        for ct in range(4):
            e(f's_waitcnt lgkmcnt({0 if O["stamps"] else 6-2*ct})')
            c = '0' if ks == 0 else f'v[{80+4*ct}:{83+4*ct}]'
            e(f'v_mfma_f32_16x16x32_bf16 v[{80+4*ct}:{83+4*ct}], v[{64+4*ct}:{67+4*ct}], v[{16+4*ks}:{19+4*ks}], {c}')
    g.stamp(2)
    e('s_mov_b64 exec, s[74:75]\ns_nop 3')
    for ct in range(4):
        g.tag(range(80 + 4*ct, 84 + 4*ct), 55)
        e(f'global_store_dwordx4 v52, v[{80+4*ct}:{83+4*ct}], s[46:47] offset:{ct*64} sc1')
    e('s_mov_b64 exec, -1')
    g.stamp(3)
    e('s_waitcnt vmcnt(4)')
    for k in range(4):
        e(f'''
        v_lshlrev_b32 v56, 16, v{40+k}
        v_and_b32 v57, 0xffff0000, v{40+k}
        v_lshlrev_b32 v58, 16, v{44+k}
        v_and_b32 v59, 0xffff0000, v{44+k}
        v_mul_f32 v56, v56, v58
        v_mul_f32 v57, v57, v59
        v_cvt_pk_bf16_f32 v56, v56, v57
        v_lshlrev_b32 v57, 16, v56
        v_and_b32 v56, 0xffff0000, v56
        v_add_f32 v57, v57, v56
        ''')
        e('v_mov_b32 v60, v57' if k == 0 else 'v_add_f32 v60, v60, v57')
    for r in (1, 2, 4, 8):
        e(f's_nop 1\nv_add_f32_dpp v60, v60, v60 row_ror:{r} row_mask:0xf bank_mask:0xf')
    e('''
    v_mov_b32 v61, v60
    s_nop 1
    v_permlane16_swap_b32 v60, v61
    v_add_f32 v60, v60, v61
    v_mov_b32 v61, v60
    s_nop 1
    v_permlane32_swap_b32 v60, v61
    v_add_f32 v60, v60, v61
    v_cvt_pk_bf16_f32 v60, v60, v60
    v_and_b32 v60, 0xffff0000, v60
    v_mul_f32 v60, 0xbfb8aa3b, v60
    v_exp_f32 v60, v60
    s_nop 0
    v_add_f32 v60, 1.0, v60
    v_rcp_f32 v60, v60
    s_nop 0
    v_cvt_pk_bf16_f32 v60, v60, v60
    v_and_b32 v60, 0xffff0000, v60
    v_sub_f32 v61, 1.0, v60
    v_cvt_pk_bf16_f32 v61, v61, v61
    v_and_b32 v61, 0xffff0000, v61
    ''')
    g.lds_wait(54, 0, 40, 56, sleep=1)
    for ks in range(2):
        for ct in range(4):
            for t in range(2):
                e(f'ds_read_b64_tr_b16 v[{64+4*ct+2*t}:{65+4*ct+2*t}], v{48+ct} offset:{L_W1 + ks*4096 + t*512}')
        e('s_waitcnt lgkmcnt(0)')
        for ct in range(4):
            c = '0' if ks == 0 else f'v[{96+4*ct}:{99+4*ct}]'
            e(f'v_mfma_f32_16x16x32_bf16 v[{96+4*ct}:{99+4*ct}], v[{64+4*ct}:{67+4*ct}], v[{32+4*ks}:{35+4*ks}], {c}')
    e('s_mov_b64 exec, s[74:75]\ns_nop 3')
    for ct in range(4):
        g.tag(range(96 + 4*ct, 100 + 4*ct), 55)
        e(f'global_store_dwordx4 v53, v[{96+4*ct}:{99+4*ct}], s[48:49] offset:{ct*64} sc1')
    e('s_mov_b64 exec, -1')
    g.stamp(4)
    if O['fp_layout'] == 'cons':
        e(f's_lshl_b32 s6, s65, 15\ns_lshl_b32 s7, s64, 10\ns_add_u32 s6, s6, s7\ns_add_u32 s6, s6, {WS_FP}')
        e('v_lshlrev_b32 v62, 4, v0')
    else:
        e(f's_lshl_b32 s6, s65, 15\ns_lshl_b32 s7, s64, 4\ns_add_u32 s6, s6, s7\ns_add_u32 s6, s6, {WS_FP}')
        e('v_lshlrev_b32 v62, 9, v0')
    g.base(50, 34, 's6')
    e('s_lshl_b32 s6, s70, 10\ns_add_u32 s6, s6, s71')
    g.base(52, 30, 's6')
    e('''
    s_mov_b32 s76, 0
    s_mov_b32 s77, -1
    v_cndmask_b32 v60, v60, v61, s[76:77]
    v_mov_b32 v68, 0
    v_mov_b32 v69, 0
    v_mov_b32 v70, 0
    v_mov_b32 v71, 0
    s_lshl_b32 s6, s72, 16
    s_and_b32 s7, s72, 0xffff0000
    s_lshl_b32 s78, s73, 16
    s_and_b32 s79, s73, 0xffff0000
    s_mov_b64 exec, s[76:77]
    v_mov_b32 v68, s6
    v_mov_b32 v69, s7
    v_mov_b32 v70, s78
    v_mov_b32 v71, s79
    s_mov_b64 exec, -1
    v_mov_b32 v63, 0
    ''')
    g.lds_wait(54, 8, 4, 56, sleep=2)
    L = g.label('Lf')
    e(f'{L}:')
    g.cap_check()
    e('global_load_dwordx4 v[64:67], v62, s[50:51] sc1\ns_waitcnt vmcnt(0)')
    g.tagcheck(range(64, 68), 56)
    e(f's_cbranch_vccnz {L}')
    g.stamp(5)
    for r in (1, 2, 4, 8):
        for k in range(4): e(f'v_add_f32_dpp v{64+k}, v{64+k}, v{64+k} row_ror:{r} row_mask:0xf bank_mask:0xf')
    for k in range(4): e(f'v_mov_b32 v{72+k}, v{64+k}')
    for k in range(4): e(f'v_permlane16_swap_b32 v{64+k}, v{72+k}')
    for k in range(4): e(f'v_add_f32 v{64+k}, v{64+k}, v{72+k}')
    def rnd4():
        e('''
        v_cvt_pk_bf16_f32 v72, v64, v65
        v_cvt_pk_bf16_f32 v73, v66, v67
        v_lshlrev_b32 v64, 16, v72
        v_and_b32 v65, 0xffff0000, v72
        v_lshlrev_b32 v66, 16, v73
        v_and_b32 v67, 0xffff0000, v73
        ''')
    rnd4()
    for k in range(4): e(f'v_add_f32 v{64+k}, v{64+k}, v{68+k}')
    rnd4()
    for k in range(4): e(f'v_mul_f32 v{64+k}, v{64+k}, v60')
    rnd4()
    for k in range(4): e(f'v_mov_b32 v{72+k}, v{64+k}')
    for k in range(4): e(f'v_permlane32_swap_b32 v{64+k}, v{72+k}')
    for k in range(4): e(f'v_add_f32 v{64+k}, v{64+k}, v{72+k}')
    e('''
    v_cvt_pk_bf16_f32 v72, v64, v65
    v_cvt_pk_bf16_f32 v73, v66, v67
    s_mov_b64 exec, 1
    global_store_dwordx2 v63, v[72:73], s[52:53]
    s_cmp_lg_u32 s2, 0
    s_cbranch_scc1 L_fin2
    v_mov_b32 v72, s82
    global_store_dword v63, v72, s[34:35] sc1
    L_fin2:
    ''')
    g.stamp(6)
    g.flush_stamps(7, {3:5, 4:6, 5:7, 6:8})
    e('s_endpgm')

    e('L_attn:')
    e(f'''
    s_lshr_b32 s66, s5, 4
    s_and_b32 s67, s5, 15
    s_lshl_b32 s6, s66, 16
    s_lshl_b32 s7, s4, 13
    s_add_u32 s6, s6, s7
    s_add_u32 s6, s6, {WS_QP + 4096}
    v_lshlrev_b32 v3, 4, v0
    v_lshrrev_b32 v4, 5, v0
    v_mul_u32_u24 v4, 320, v4
    v_and_b32 v5, 31, v0
    v_lshl_add_u32 v4, v5, 3, v4
    v_add_u32 v4, {L_Q}, v4
    v_and_b32 v5, 3, v2
    v_mul_u32_u24 v6, 320, v5
    v_lshl_add_u32 v6, v1, 4, v6
    v_add_u32 v7, {L_Q}, v6
    v_lshrrev_b32 v8, 2, v2
    v_mov_b32 v9, {L_ZERO}
    ''')
    for t in range(4):
        e(f'v_cmp_eq_u32 vcc, {t}, v8\ns_nop 1\nv_cndmask_b32 v{10+t}, v9, v7, vcc')
    e(f'''
    v_xor_b32 v14, v1, v2
    v_lshlrev_b32 v14, 4, v14
    v_lshl_add_u32 v14, v2, 8, v14
    v_xor_b32 v15, 64, v14
    v_xor_b32 v16, 0x80, v14
    v_xor_b32 v17, 0xc0, v14
    v_mul_u32_u24 v18, 320, v5
    v_lshl_add_u32 v18, v8, 5, v18
    v_lshl_add_u32 v18, v1, 3, v18
    v_add_u32 v18, {L_P}, v18
    v_mov_b32 v19, {L_FLAG}
    v_lshlrev_b32 v20, 9, v0
    s_waitcnt lgkmcnt(0)
    ''')
    g.base(40, 34, 's6')
    e(f's_lshl_b32 s6, s4, 11\ns_lshl_b32 s7, s5, 4\ns_add_u32 s6, s6, s7\ns_add_u32 s6, s6, {WS_ML}')
    g.base(42, 34, 's6')
    g.epoch()
    g.epoch_done(21)
    e('s_barrier')
    g.stamp(1)
    e(f's_sleep {O.get("qsleep", 16)}')
    L = g.label('Lq')
    e(f'{L}:')
    g.cap_check()
    for kq in range(4):
        for hf in range(2):
            r = 32 + kq * 8 + hf * 4
            e(f'global_load_dwordx4 v[{r}:{r+3}], v3, s[40:41] offset:{kq*2048 + hf*1024 - 4096} sc1')
    e('s_waitcnt vmcnt(0)')
    g.tagcheck(range(32, 64), 22)
    e(f's_cbranch_vccnz {L}')
    g.stamp(2)
    for k in range(8): e(f'v_add_f32 v{32+k}, v{32+k}, v{40+k}\nv_add_f32 v{48+k}, v{48+k}, v{56+k}')
    for k in range(8): e(f'v_add_f32 v{32+k}, v{32+k}, v{48+k}')
    for k in range(4): e(f'v_cvt_pk_bf16_f32 v{40+k}, v{32+2*k}, v{33+2*k}')
    e('ds_write_b64 v4, v[40:41]\nds_write_b64 v4, v[42:43] offset:640')
    for t in range(4):
        for ks in range(4):
            r = 64 + 16*t + 4*ks
            e(f'ds_read_b128 v[{r}:{r+3}], v{10+t} offset:{ks*64}')
    g.lds_wait(19, 0, 32, 22)
    g.stamp(3)
    def kread(T):
        for ks in range(4):
            r = 128 + 16*(T & 3) + 4*ks
            e(f'ds_read_b128 v[{r}:{r+3}], v{14+ks} offset:{L_K + T*4096}')
    kread(0); kread(1); kread(2)
    for T in range(8):
        if T + 3 < 8: kread(T + 3)
        ahead = min(3, 7 - T)
        e(f's_waitcnt lgkmcnt({0 if O["stamps"] else 4*ahead})')
        D = 24 + 4*(T >> 2); t = T & 3
        for ks in range(4):
            a = 128 + 16*(T & 3) + 4*ks; b = 64 + 16*t + 4*ks
            c = '0' if (t == 0 and ks == 0) else f'v[{D}:{D+3}]'
            e(f'v_mfma_f32_16x16x32_bf16 v[{D}:{D+3}], v[{a}:{a+3}], v[{b}:{b+3}], {c}')
    e('s_mov_b32 s68, 0x3db504f3\ns_mov_b32 s69, 0x3fb8aa3b\ns_nop 5')
    def rnd8():
        for k in range(4): e(f'v_cvt_pk_bf16_f32 v{32+k}, v{24+2*k}, v{25+2*k}')
        for k in range(4): e(f'v_lshlrev_b32 v{24+2*k}, 16, v{32+k}\nv_and_b32 v{25+2*k}, 0xffff0000, v{32+k}')
    rnd8()
    for k in range(8): e(f'v_mul_f32 v{24+k}, s68, v{24+k}')
    rnd8()
    e('''
    v_max3_f32 v36, v24, v25, v26
    v_max3_f32 v37, v27, v28, v29
    v_max3_f32 v36, v36, v30, v31
    v_max_f32 v36, v36, v37
    s_nop 1
    v_max_f32_dpp v36, v36, v36 row_ror:4 row_mask:0xf bank_mask:0xf
    s_nop 1
    v_max_f32_dpp v36, v36, v36 row_ror:8 row_mask:0xf bank_mask:0xf
    v_mov_b32 v37, v36
    s_nop 1
    v_permlane16_swap_b32 v36, v37
    v_max_f32 v36, v36, v37
    v_mov_b32 v37, v36
    s_nop 1
    v_permlane32_swap_b32 v36, v37
    v_max_f32 v36, v36, v37
    ''')
    for k in range(8): e(f'v_sub_f32 v{24+k}, v{24+k}, v36')
    for k in range(8): e(f'v_mul_f32 v{24+k}, s69, v{24+k}')
    for k in range(8): e(f'v_exp_f32 v{24+k}, v{24+k}')
    e('s_nop 0')
    for k in range(4): e(f'v_cvt_pk_bf16_f32 v{32+k}, v{24+2*k}, v{25+2*k}')
    e('''
    v_mov_b32 v22, 1
    ds_write_b64 v18, v[32:33]
    ds_write_b64 v18, v[34:35] offset:128
    ds_write_b32 v19, v22 offset:4
    v_add_f32 v24, v24, v25
    v_add_f32 v26, v26, v27
    v_add_f32 v28, v28, v29
    v_add_f32 v30, v30, v31
    v_add_f32 v24, v24, v26
    v_add_f32 v28, v28, v30
    v_add_f32 v37, v24, v28
    s_nop 1
    v_add_f32_dpp v37, v37, v37 row_ror:4 row_mask:0xf bank_mask:0xf
    s_nop 1
    v_add_f32_dpp v37, v37, v37 row_ror:8 row_mask:0xf bank_mask:0xf
    v_mov_b32 v38, v37
    s_nop 1
    v_permlane16_swap_b32 v37, v38
    v_add_f32 v37, v37, v38
    v_mov_b32 v38, v37
    s_nop 1
    v_permlane32_swap_b32 v37, v38
    v_add_f32 v37, v37, v38
    v_mov_b32 v38, v36
    v_mov_b32 v39, v37
    ''')
    g.tag(range(36, 40), 21)
    e('s_mov_b64 exec, 0xf\nglobal_store_dwordx4 v20, v[36:39], s[42:43] sc1')
    g.stamp(4)
    g.flush_stamps(5, {2:9, 4:10})
    e('s_endpgm')

    e('L_ffn:')
    e(f'''
    v_mov_b32 v4, 0
    v_mov_b32 v5, 0
    v_lshlrev_b32 v3, 3, v0
    v_add_u32 v3, {L_ZERO}, v3
    ds_write_b64 v3, v[4:5]
    v_and_b32 v6, 1, v1
    v_lshlrev_b32 v7, 11, v6
    v_lshl_add_u32 v7, v2, 4, v7
    v_min_u32 v8, 13, v2
    v_lshlrev_b32 v8, 3, v8
    v_mul_u32_u24 v9, 160, v6
    v_lshl_add_u32 v9, v2, 3, v9
    v_add_u32 v9, {L_ACTH}, v9
    v_and_b32 v10, 1, v2
    v_mul_u32_u24 v10, 160, v10
    v_lshl_add_u32 v10, v1, 4, v10
    v_add_u32 v10, {L_ACTH}, v10
    v_bfe_u32 v11, v0, 2, 2
    v_and_b32 v12, 3, v0
    v_lshl_add_u32 v13, v1, 3, v11
    v_lshlrev_b32 v13, 7, v13
    v_lshl_add_u32 v13, v12, 3, v13
    v_lshrrev_b32 v11, 1, v11
    v_lshl_add_u32 v11, v6, 1, v11
    v_lshl_add_u32 v16, v11, 5, v13
    v_add_u32 v16, {L_W2}, v16
    v_xor_b32 v17, 32, v16
    v_xor_b32 v18, 64, v16
    v_xor_b32 v19, 0x60, v16
    v_mov_b32 v20, {L_FLAG}
    s_lshl_b32 s6, s64, 12
    s_add_u32 s6, s6, {WS_HP}
    s_mul_i32 s7, s64, 112
    s_waitcnt lgkmcnt(0)
    ''')
    g.base(40, 34, 's6'); g.base(42, 22, 's7')
    g.epoch()
    e('global_load_dwordx2 v[22:23], v8, s[42:43]')
    if O['fp_layout'] == 'cons':
        e(f's_lshl_b32 s6, s65, 15\ns_lshl_b32 s7, s64, 4\ns_add_u32 s6, s6, s7\ns_add_u32 s6, s6, {WS_FP + 512}')
        e('v_lshlrev_b32 v24, 14, v2\nv_lshl_add_u32 v24, v1, 10, v24')
        ctstride = 4096
    else:
        e(f's_lshl_b32 s6, s65, 15\ns_lshl_b32 s7, s64, 9\ns_add_u32 s6, s6, s7\ns_add_u32 s6, s6, {WS_FP + 16384}')
        e('v_lshlrev_b32 v24, 8, v2\nv_lshl_add_u32 v24, v1, 4, v24')
        ctstride = 64
    g.base(44, 34, 's6')
    for ct in range(1, 4): e(f'v_add_u32 v{24+ct}, {ct*ctstride}, v24')
    e('s_mov_b32 s74, 0x00030003\ns_mov_b32 s75, 0x00030003')
    e('s_mov_b32 s76, 0x3fff3fff\ns_mov_b32 s77, 0')
    g.epoch_done(21)
    e('s_barrier')
    g.stamp(1)
    g.lds_wait(20, 0, O.get('hp_after', 56), 28, sleep=4)
    e('s_mov_b64 exec, s[76:77]')
    L = g.label('Lh')
    e(f'{L}:')
    g.cap_check()
    for j in range(8): e(f'global_load_dwordx4 v[{32+4*j}:{35+4*j}], v7, s[40:41] offset:{j*256} sc1')
    e('s_waitcnt vmcnt(0)')
    g.tagcheck(range(32, 64), 28)
    e(f's_cbranch_vccnz {L}')
    g.stamp(2)
    for k in range(16): e(f'v_add_f32 v{32+k}, v{32+k}, v{48+k}')
    for k in range(8): e(f'v_add_f32 v{32+k}, v{32+k}, v{40+k}')
    for k in range(4): e(f'v_add_f32 v{32+k}, v{32+k}, v{36+k}')
    def r4():
        e('''
        v_cvt_pk_bf16_f32 v36, v32, v33
        v_cvt_pk_bf16_f32 v37, v34, v35
        v_lshlrev_b32 v32, 16, v36
        v_and_b32 v33, 0xffff0000, v36
        v_lshlrev_b32 v34, 16, v37
        v_and_b32 v35, 0xffff0000, v37
        ''')
    r4()
    e('''
    v_lshlrev_b32 v40, 16, v22
    v_and_b32 v41, 0xffff0000, v22
    v_lshlrev_b32 v42, 16, v23
    v_and_b32 v43, 0xffff0000, v23
    ''')
    for k in range(4): e(f'v_add_f32 v{32+k}, v{32+k}, v{40+k}')
    r4()
    import math, struct
    c1 = struct.unpack('<I', struct.pack('<f', 0.044715))[0]
    c2 = struct.unpack('<I', struct.pack('<f', -2.0 * math.log2(math.e) * math.sqrt(2.0 / math.pi)))[0]
    e(f's_mov_b32 s68, {c1:#x}\ns_mov_b32 s69, {c2:#x}')
    for k in range(4): e(f'v_mul_f32 v{40+k}, v{32+k}, v{32+k}')
    for k in range(4): e(f'v_fma_f32 v{40+k}, v{40+k}, s68, 1.0')
    for k in range(4): e(f'v_mul_f32 v{40+k}, v{40+k}, v{32+k}')
    for k in range(4): e(f'v_mul_f32 v{40+k}, s69, v{40+k}')
    for k in range(4): e(f'v_exp_f32 v{40+k}, v{40+k}')
    for k in range(4): e(f'v_add_f32 v{40+k}, 1.0, v{40+k}')
    for k in range(4): e(f'v_rcp_f32 v{40+k}, v{40+k}')
    for k in range(4): e(f'v_mul_f32 v{32+k}, v{32+k}, v{40+k}')
    e('''
    v_cvt_pk_bf16_f32 v4, v32, v33
    v_cvt_pk_bf16_f32 v5, v34, v35
    s_mov_b32 exec_lo, -1
    ds_write_b64 v9, v[4:5]
    s_mov_b64 exec, -1
    ds_read_b128 v[44:47], v10
    ds_read_b128 v[48:51], v10 offset:64
    ''')
    g.lds_wait(20, 0, 96, 28)
    g.stamp(3)
    for ks in range(2):
        for ct in range(4):
            for t in range(2):
                r = 64 + 16*ks + 4*ct + 2*t
                e(f'ds_read_b64_tr_b16 v[{r}:{r+1}], v{16+ct} offset:{ks*4096 + t*512}')
    for ks in range(2):
        e(f's_waitcnt lgkmcnt({0 if (O["stamps"] or ks) else 8})')
        for ct in range(4):
            r = 64 + 16*ks + 4*ct
            c = '0' if ks == 0 else f'v[{96+4*ct}:{99+4*ct}]'
            e(f'v_mfma_f32_16x16x32_bf16 v[{96+4*ct}:{99+4*ct}], v[{r}:{r+3}], v[{44+4*ks}:{47+4*ks}], {c}')
    e('s_mov_b64 exec, s[74:75]\ns_nop 3')
    for ct in range(4):
        g.tag(range(96 + 4*ct, 100 + 4*ct), 21)
        e(f'global_store_dwordx4 v{24+ct}, v[{96+4*ct}:{99+4*ct}], s[44:45] sc1')
    g.stamp(4)
    g.flush_stamps(5, {2:11, 4:12})
    e('s_endpgm')

    e('L_pv:')
    e(f'''
    s_sub_u32 s66, s3, 4
    v_and_b32 v5, 3, v2
    v_mul_u32_u24 v6, 320, v5
    v_lshl_add_u32 v6, v1, 4, v6
    v_add_u32 v7, {L_P}, v6
    v_lshrrev_b32 v8, 2, v2
    v_mov_b32 v9, {L_ZERO}
    v_cmp_eq_u32 vcc, 0, v8
    s_nop 1
    v_cndmask_b32 v10, v9, v7, vcc
    v_cmp_eq_u32 vcc, 1, v8
    s_nop 1
    v_cndmask_b32 v11, v9, v7, vcc
    v_bfe_u32 v12, v0, 2, 2
    v_and_b32 v13, 3, v0
    v_lshl_add_u32 v14, v1, 3, v12
    v_and_b32 v15, 1, v1
    v_lshl_add_u32 v16, v15, 2, v12
    s_lshl_b32 s6, s66, 1
    v_xor_b32 v16, s6, v16
    v_lshlrev_b32 v16, 5, v16
    v_lshl_add_u32 v16, v14, 8, v16
    v_lshl_add_u32 v16, v13, 3, v16
    v_add_u32 v16, {L_V}, v16
    v_xor_b32 v17, 32, v16
    v_lshrrev_b32 v18, 1, v12
    v_lshl_add_u32 v18, v15, 1, v18
    v_xor_b32 v18, s66, v18
    v_lshlrev_b32 v18, 5, v18
    v_lshl_add_u32 v18, v14, 7, v18
    v_lshl_add_u32 v18, v13, 3, v18
    v_add_u32 v18, {L_WO}, v18
    v_mov_b32 v19, {L_FLAG}
    v_lshlrev_b32 v20, 14, v5
    v_lshl_add_u32 v20, v8, 6, v20
    v_lshl_add_u32 v20, v1, 4, v20
    v_lshlrev_b32 v22, 4, v0
    v_lshlrev_b32 v23, 4, v2
    v_lshrrev_b32 v24, 5, v0
    v_add_u32 v25, s6, v24
    v_mul_u32_u24 v25, 288, v25
    v_and_b32 v26, 31, v0
    v_lshl_add_u32 v25, v26, 3, v25
    v_add_u32 v25, {L_ACT}, v25
    v_and_b32 v26, 7, v2
    v_mul_u32_u24 v26, 288, v26
    v_lshl_add_u32 v26, v1, 4, v26
    v_add_u32 v26, {L_ACT}, v26
    s_and_b32 s7, s66, 1
    s_lshl_b32 s7, s7, 3
    v_add_u32 v27, s7, v24
    v_lshlrev_b32 v27, 2, v27
    s_lshl_b32 s6, s4, 16
    s_lshl_b32 s7, s5, 9
    s_add_u32 s6, s6, s7
    s_lshl_b32 s7, s66, 7
    s_add_u32 s6, s6, s7
    s_add_u32 s6, s6, {WS_OP}
    s_waitcnt lgkmcnt(0)
    ''')
    g.base(40, 34, 's6')
    g.epoch()
    e(f's_lshl_b32 s6, s64, 14\ns_lshl_b32 s7, s66, 12\ns_add_u32 s6, s6, s7\ns_add_u32 s6, s6, {WS_OP}')
    g.base(42, 34, 's6')
    e(f's_lshl_b32 s6, s64, 9\ns_lshr_b32 s7, s66, 1\ns_lshl_b32 s7, s7, 8\ns_add_u32 s6, s6, s7\ns_add_u32 s6, s6, {WS_ML}')
    g.base(44, 34, 's6')
    if O['fp_layout'] == 'cons':
        e(f's_lshl_b32 s6, s65, 15\ns_lshl_b32 s7, s64, 4\ns_add_u32 s6, s6, s7\ns_lshl_b32 s7, s66, 12\ns_add_u32 s6, s6, s7\ns_add_u32 s6, s6, {WS_FP}')
        e('v_lshlrev_b32 v28, 14, v8\nv_lshl_add_u32 v28, v1, 10, v28')
    else:
        e(f's_lshl_b32 s6, s65, 15\ns_lshl_b32 s7, s64, 9\ns_add_u32 s6, s6, s7\ns_lshl_b32 s7, s66, 6\ns_add_u32 s6, s6, s7\ns_add_u32 s6, s6, {WS_FP}')
        e('v_lshlrev_b32 v28, 8, v8\nv_lshl_add_u32 v28, v1, 4, v28')
    g.base(46, 34, 's6')
    e('s_mov_b32 s74, 0x00ff00ff\ns_mov_b32 s75, 0x00ff00ff')
    e('s_mov_b32 s76, 0x00110011\ns_mov_b32 s77, 0x00110011')
    e('s_mov_b32 s69, 0x3fb8aa3b')
    g.epoch_done(21)
    e('s_barrier')
    g.stamp(1)
    g.lds_wait(19, 4, 1, 29, sleep=2)
    for ee in range(2):
        for ks in range(4):
            r = 32 + 16*ee + 4*ks
            e(f'ds_read_b128 v[{r}:{r+3}], v{10+ee} offset:{ks*64}')
    g.stamp(2)
    for ks in range(4):
        g.lds_wait(19, 0, 48 + 8*ks, 29)
        for ee in range(2):
            for t in range(2):
                r = 64 + 4*ee + 2*t
                e(f'ds_read_b64_tr_b16 v[{r}:{r+1}], v{16+ee} offset:{ks*8192 + t*1024}')
        for ee in range(2):
            e(f's_waitcnt lgkmcnt({0 if (O["stamps"] or ee) else 2})')
            c = '0' if (ks == 0 and ee == 0) else 'v[72:75]'
            e(f'v_mfma_f32_16x16x32_bf16 v[72:75], v[{64+4*ee}:{67+4*ee}], v[{32+16*ee+4*ks}:{35+16*ee+4*ks}], {c}')
    e('s_mov_b64 exec, s[74:75]\ns_nop 6')
    g.tag(range(72, 76), 21)
    e('global_store_dwordx4 v20, v[72:75], s[40:41] sc1')
    e('s_mov_b64 exec, -1')
    g.stamp(3)
    L = g.label('Lm')
    e(f'{L}:')
    g.cap_check()
    e('global_load_dwordx4 v[32:35], v23, s[44:45] sc1\ns_waitcnt vmcnt(0)')
    g.tagcheck(range(32, 36), 29)
    e(f's_cbranch_vccnz {L}')
    e('v_and_b32 v32, 0xffff0000, v32\nv_mov_b32 v34, v32')
    for r in (1, 2, 4, 8): e(f's_nop 1\nv_max_f32_dpp v34, v34, v34 row_ror:{r} row_mask:0xf bank_mask:0xf')
    e('''
    v_sub_f32 v32, v32, v34
    v_mul_f32 v32, s69, v32
    v_exp_f32 v32, v32
    s_nop 0
    v_mul_f32 v33, v33, v32
    ''')
    for r in (1, 2, 4, 8): e(f's_nop 1\nv_add_f32_dpp v33, v33, v33 row_ror:{r} row_mask:0xf bank_mask:0xf')
    e('v_rcp_f32 v33, v33\ns_nop 0\nv_mul_f32 v32, v32, v33')
    for k in range(4): e(f'ds_bpermute_b32 v{36+k}, v27, v32 offset:{8*k}')
    g.lds_wait(19, 0, 88, 29)
    for ks in range(4):
        for t in range(2):
            r = 80 + 4*ks + 2*t
            e(f'ds_read_b64_tr_b16 v[{r}:{r+1}], v18 offset:{ks*4096 + t*512}')
    g.stamp(4)
    L = g.label('Lo')
    e(f'{L}:')
    g.cap_check()
    for k in range(4): e(f'global_load_dwordx4 v[{40+4*k}:{43+4*k}], v22, s[42:43] offset:{k*1024} sc1')
    e('s_waitcnt vmcnt(0)')
    g.tagcheck(range(40, 56), 29)
    e(f's_cbranch_vccnz {L}')
    g.stamp(5)
    e('s_waitcnt lgkmcnt(0)')
    for i in range(4): e(f'v_mul_f32 v{56+i}, v36, v{40+i}')
    for k in range(1, 4):
        for i in range(4): e(f'v_fmac_f32 v{56+i}, v{36+k}, v{40+4*k+i}')
    e('''
    v_cvt_pk_bf16_f32 v60, v56, v57
    v_cvt_pk_bf16_f32 v61, v58, v59
    v_mov_b32 v62, 1
    ds_write_b64 v25, v[60:61]
    s_mov_b64 exec, 1
    ds_add_u32 v19, v62 offset:8
    s_mov_b64 exec, -1
    ''')
    g.lds_wait(19, 8, 4, 29)
    for ks in range(4): e(f'ds_read_b128 v[{40+4*ks}:{43+4*ks}], v26 offset:{ks*64}')
    for ks in range(4):
        e(f's_waitcnt lgkmcnt({0 if O["stamps"] else 3-ks})')
        c = '0' if ks == 0 else 'v[72:75]'
        e(f'v_mfma_f32_16x16x32_bf16 v[72:75], v[{80+4*ks}:{83+4*ks}], v[{40+4*ks}:{43+4*ks}], {c}')
    e('s_nop 7')
    for qp in ('[1,0,3,2]', '[2,3,0,1]'):
        for i in range(4): e(f'v_add_f32_dpp v{72+i}, v{72+i}, v{72+i} quad_perm:{qp} row_mask:0xf bank_mask:0xf')
    e('s_mov_b64 exec, s[76:77]')
    g.tag(range(72, 76), 21)
    e('global_store_dwordx4 v28, v[72:75], s[46:47] sc1')
    g.stamp(6)
    g.flush_stamps(7, {3:13, 5:14, 6:15})
    e('L_end:\ns_endpgm')
    g.o.append(f'''.section .rodata,"a"
.p2align 6
.amdhsa_kernel {NAME}_kernel
  .amdhsa_next_free_vgpr 256
  .amdhsa_next_free_sgpr 102
  .amdhsa_accum_offset 256
  .amdhsa_group_segment_fixed_size 0
  .amdhsa_kernarg_size 112
  .amdhsa_user_sgpr_count 2
  .amdhsa_user_sgpr_kernarg_segment_ptr 1
  .amdhsa_system_sgpr_workgroup_id_x 1
.end_amdhsa_kernel''')
    open(fname, 'w').write('\n'.join(g.o) + '\n')

if __name__ == '__main__':
    gen('k_nt.s', nt=True)
    gen('k_def.s', nt=False)
    gen('k_nt_st.s', nt=True, stamps=True)
    gen('k_def_st.s', nt=False, stamps=True)
    gen('k_nt_dbg.s', nt=True, stamps=True, dbgtime=True)
    gen('k_def_dbg.s', nt=False, stamps=True, dbgtime=True)
```

```python
import sys
NAME = 'gated_mix__sliding_block_cached__dense_activation_gelu__decode'

HEADER = open('cdna_kernels/%s.s.ref' % NAME).read().split('; Override launch')[0]

WS_QP = 0x10000
WS_HP = 0x30000
WS_ML = 0x50000
WS_OP = 0x80000
WS_FP = 0x100000
WS_STAMP = 0x8000000
L_WQ = 0x0000
L_K = 0x4000
L_W1 = 0xC000
L_V = 0xE000
L_WO = 0x16000
L_W2 = 0x1A000
L_MISC = 0x1C000
L_Q = L_MISC
L_P = L_MISC + 0x500
L_ZERO = L_MISC + 0xA00
L_FLAG = L_MISC + 0xB00
L_ACTH = L_MISC + 0xC00
L_ACT = L_MISC + 0x1000
LDS_BYTES = L_MISC + 0x1A00

class G:
    def __init__(s, **opt):
        s.o = []
        s.opt = dict(W=24, nt=True, stamps=False, fp_layout='cons', spin_cap=True)
        s.opt.update(opt)
        s.lab = 0
    def e(s, txt):
        for line in txt.strip('\n').split('\n'):
            s.o.append('    ' + line.strip() if not line.strip().endswith(':') else line.strip())
    def label(s, p='L'):
        s.lab += 1
        return f'{p}_{s.lab}'
    def stamp(s, k):
        if s.opt['stamps']:
            s.e(f's_memrealtime s[{84+2*k}:{85+2*k}]')
    def flush_stamps(s, n, dbg=None):
        if not s.opt['stamps']: return
        s.e('s_mov_b64 exec, -1')
        s.e('s_waitcnt lgkmcnt(0)')
        if s.opt.get('dbgtime'):
            L = s.label('Ld')
            s.e(f's_cmp_lg_u32 s2, {s.opt.get("dbgwg", 0)}\ns_cbranch_scc1 {L}\ns_cmp_gt_u32 s3, 4\ns_cbranch_scc1 {L}')
            s.e('s_mov_b64 exec, 1\nv_mov_b32 v251, 0')
            for k, slot in (dbg or {}).items():
                if k: s.e(f's_sub_u32 s{84+2*k}, s{84+2*k}, s84')
                s.e(f'v_mov_b32 v250, s{84+2*k}')
                s.e(f'global_store_dword v251, v250, s[32:33] offset:{4*slot}')
            s.e(f'{L}:')
            return
        s.e('v_mov_b32 v250, 0')
        for k in range(n): s.e(f'v_writelane_b32 v250, s{84+2*k}, {k}')
        s.e(f's_lshl_b32 s6, s2, 8\ns_lshl_b32 s7, s3, 5\ns_add_u32 s6, s6, s7\ns_add_u32 s6, s6, {WS_STAMP}')
        s.e('s_add_u32 s6, s34, s6\ns_addc_u32 s7, s35, 0')
        s.e('v_lshlrev_b32 v251, 2, v0')
        s.e('s_mov_b64 exec, 0xff')
        s.e('global_store_dword v251, v250, s[6:7]')
    def srd(s, dst, ptr, size):
        s.e(f's_add_u32 s{dst}, s{ptr}, s6\ns_addc_u32 s{dst+1}, s{ptr+1}, 0\ns_mov_b32 s{dst+2}, {size}\ns_mov_b32 s{dst+3}, 0x20000')
    def base(s, dst, ptr, sreg='s6'):
        s.e(f's_add_u32 s{dst}, s{ptr}, {sreg}\ns_addc_u32 s{dst+1}, s{ptr+1}, 0')
    def cap_init(s):
        if s.opt['spin_cap']: s.e('s_mov_b32 s83, 0x40000')
    def cap_check(s):
        if s.opt['spin_cap']:
            s.e('s_sub_u32 s83, s83, 1\ns_cbranch_scc1 L_end')
    def lds_wait(s, vaddr, off, n, vt, sleep=0):
        L = s.label('Lw')
        s.e(f'{L}:')
        if sleep: s.e(f's_sleep {sleep}')
        s.cap_check()
        s.e(f'ds_read_b32 v{vt}, v{vaddr} offset:{off}\ns_waitcnt lgkmcnt(0)')
        s.e(f'v_cmp_gt_u32 vcc, {n}, v{vt}\ns_cbranch_vccnz {L}')
    def tagcheck(s, regs, vacc):
        first = True
        for r in regs:
            if first:
                s.e(f'v_xor_b32 v{vacc}, s80, v{r}'); first = False
            else:
                s.e(f'v_bitop3_b32 v{vacc}, v{vacc}, v{r}, s80 bitop3:0xf6')
        s.e(f'v_and_b32 v{vacc}, 0xff, v{vacc}')
        s.e(f'v_cmp_ne_u32 vcc, 0, v{vacc}')
    def tag(s, regs, vtag):
        for r in regs: s.e(f'v_and_or_b32 v{r}, v{r}, s81, v{vtag}')
    def epoch(s):
        s.e('s_load_dword s82, s[34:35], 0')
    def epoch_done(s, vtag):
        s.e('s_waitcnt lgkmcnt(0)')
        s.e('s_add_u32 s82, s82, 1\ns_and_b32 s80, s82, 0xff\ns_mov_b32 s81, 0xffffff00')
        if vtag is not None: s.e(f'v_mov_b32 v{vtag}, s80')

def gen(fname, **opt):
    g = G(**opt); e = g.e; O = g.opt
    NT = 'nt ' if O['nt'] else ''
    g.o.append(HEADER.rstrip('\n'))
    g.o.append(f'; @launch grid=(256,1,1) block=(512,1,1) lds={LDS_BYTES}')
    g.o.append('.amdgcn_target "amdgcn-amd-amdhsa--gfx950"\n.text')
    g.o.append(f'.globl {NAME}_kernel\n.p2align 8\n.type {NAME}_kernel,@function\n{NAME}_kernel:')
    g.stamp(0)
    e('''
    s_cmp_ge_u32 s2, 256
    s_cbranch_scc1 L_end
    s_load_dwordx16 s[8:23], s[0:1], 0
    s_load_dwordx8 s[24:31], s[0:1], 64
    s_load_dwordx4 s[32:35], s[0:1], 96
    v_lshrrev_b32 v1, 6, v0
    v_and_b32 v0, 63, v0
    s_and_b32 s4, s2, 7
    v_readfirstlane_b32 s3, v1
    s_lshr_b32 s5, s2, 3
    s_lshl_b32 s64, s4, 2
    s_lshr_b32 s65, s5, 3
    s_add_u32 s64, s64, s65
    s_and_b32 s65, s5, 7
    v_lshrrev_b32 v1, 4, v0
    v_and_b32 v2, 15, v0
    ''')
    g.cap_init()
    e('''
    s_cmp_eq_u32 s3, 1
    s_cbranch_scc1 L_qprod
    s_cmp_eq_u32 s3, 2
    s_cbranch_scc1 L_attn
    s_cmp_eq_u32 s3, 3
    s_cbranch_scc1 L_ffn
    s_cmp_ge_u32 s3, 4
    s_cbranch_scc1 L_pv
    ''')
    e('''
    ; K voffs: g*256 + ((n ^ g ^ 4i)*16), i=0..3
    v_xor_b32 v3, v2, v1
    v_lshlrev_b32 v3, 4, v3
    v_lshl_add_u32 v4, v1, 8, v3
    v_xor_b32 v5, 64, v4
    v_xor_b32 v6, 0x80, v4
    v_xor_b32 v7, 0xc0, v4
    v_lshlrev_b32 v3, 1, v1
    v_xor_b32 v3, v2, v3
    v_lshlrev_b32 v3, 4, v3
    v_lshl_add_u32 v8, v1, 8, v3
    v_xor_b32 v9, 0x80, v8
    v_lshrrev_b32 v10, 3, v0
    v_and_b32 v11, 7, v0
    v_and_b32 v12, 2, v10
    v_xor_b32 v11, v11, v12
    v_lshlrev_b32 v11, 4, v11
    v_lshl_add_u32 v12, v10, 10, v11
    v_xor_b32 v13, 64, v12
    v_mul_u32_u24 v14, 3584, v10
    v_add_u32 v14, v14, v11
    v_xor_b32 v15, 64, v14
    ''')
    e(f'v_mov_b32 v16, {L_FLAG}')
    e('''
    s_lshr_b32 s6, s5, 4
    s_lshl_b32 s6, s6, 24
    s_lshl_b32 s7, s4, 21
    s_add_u32 s6, s6, s7
    s_and_b32 s7, s5, 15
    s_lshl_b32 s7, s7, 15
    s_add_u32 s6, s6, s7
    s_add_u32 s6, s6, 0x180000
    s_waitcnt lgkmcnt(0)
    ''')
    g.srd(40, 10, 32768); g.srd(44, 12, 32768)
    loads = []
    for n in range(32): loads.append((40, 4 + (n & 3), (n >> 2) * 4096, (n & 3) * 1024, L_K + (n >> 2) * 4096))
    for n in range(8): loads.append((56, 14 + (n & 1), n * 8 * 3584, 0, L_W1 + n * 1024))
    for n in range(32): loads.append((44, 8 + ((n >> 1) & 1), (n >> 2) * 4096, (n & 3) * 1024, L_V + (n >> 2) * 4096))
    for n in range(16): loads.append((48, 12 + (n & 1), n * 8192, 0, L_WO + n * 1024))
    for n in range(8): loads.append((52, 12 + (n & 1), n * 8192, 0, L_W2 + n * 1024))
    W = O['W']; W0 = O.get('W0', 8)
    N = len(loads)
    last_m0 = None; last_so = None
    marks = [32, 40, 48, 56, 64, 72, 88, 96]
    stampat = {32: 2, 72: 3, 96: 4}
    def mark(cnt):
        e(f'v_mov_b32 v17, {cnt}\nds_write_b32 v16, v17')
        if cnt in stampat: g.stamp(stampat[cnt])
    for pos, (srd, v, so, imm, m0) in enumerate(loads):
        if pos == W0:
            e('s_lshl_b32 s6, s64, 17\ns_lshl_b32 s7, s65, 7\ns_add_u32 s6, s6, s7'); g.srd(48, 16, 127 * 1024 + 128)
            e('s_mul_i32 s6, s64, 57344\ns_add_u32 s6, s6, s7'); g.srd(52, 24, 55 * 1024 + 128)
            e('s_mul_i32 s6, s65, 229376\ns_mul_i32 s7, s64, 112\ns_add_u32 s6, s6, s7'); g.srd(56, 20, 63 * 3584 + 112)
            e('s_barrier')
            g.stamp(1)
        if m0 != last_m0: e(f's_mov_b32 m0, {m0}'); last_m0 = m0
        if so != last_so: e(f's_mov_b32 s7, {so}'); last_so = so
        else: last_so = so
        e(f'buffer_load_dwordx4 v{v}, s[{srd}:{srd+3}], s7 offen offset:{imm} {NT}lds')
        if pos == W0 - 1: last_so = None
        if pos >= W - 1 and pos != N - 1:
            e(f's_waitcnt vmcnt({W-1})')
            landed = pos - (W - 1) + 1
            if marks and marks[0] == landed: mark(marks.pop(0))
    for mk in marks:
        e(f's_waitcnt vmcnt({N-mk})'); mark(mk)
    g.flush_stamps(5, {0:0, 1:1, 2:2, 3:3, 4:4})
    e('s_endpgm')

    e('L_qprod:')
    e('''
    v_lshrrev_b32 v10, 3, v0
    v_and_b32 v11, 7, v0
    v_and_b32 v12, 2, v10
    v_xor_b32 v11, v11, v12
    v_lshlrev_b32 v11, 4, v11
    v_lshl_add_u32 v12, v10, 13, v11
    v_xor_b32 v13, 64, v12
    v_and_b32 v3, 1, v0
    v_lshlrev_b32 v3, 10, v3
    v_lshl_add_u32 v3, v1, 4, v3
    s_and_b32 s66, s5, 3
    s_lshr_b32 s67, s5, 2
    s_lshl_b32 s6, s66, 20
    s_lshl_b32 s7, s4, 10
    s_add_u32 s6, s6, s7
    s_lshl_b32 s7, s67, 7
    s_add_u32 s6, s6, s7
    s_lshl_b32 s68, s66, 8
    s_lshl_b32 s69, s65, 7
    s_waitcnt lgkmcnt(0)
    ''')
    g.srd(36, 14, 127 * 8192 + 128)
    g.base(40, 8, 's68'); g.base(42, 8, 's69')
    g.epoch()
    for ks in range(4): e(f'global_load_dwordx4 v[{16+4*ks}:{19+4*ks}], v3, s[40:41] offset:{ks*64}')
    for n in range(16):
        e(f's_mov_b32 m0, {L_WQ + n*1024}\ns_mov_b32 s7, {n*65536}')
        e(f'buffer_load_dwordx4 v{12+(n&1)}, s[36:39], s7 offen {NT}lds')
    for ks in range(2): e(f'global_load_dwordx4 v[{32+4*ks}:{35+4*ks}], v3, s[42:43] offset:{ks*64}')
    e('''
    s_lshr_b32 s70, s64, 4
    s_lshl_b32 s6, s70, 10
    v_lshlrev_b32 v4, 4, v0
    ''')
    g.base(44, 8, 's6')
    e('global_load_dwordx4 v[40:43], v4, s[44:45]')
    e('global_load_dwordx4 v[44:47], v4, s[28:29]')
    e('''
    s_and_b32 s71, s64, 15
    s_lshl_b32 s71, s71, 3
    s_add_u32 s71, s71, s69
    s_load_dwordx2 s[72:73], s[26:27], s71
    v_bfe_u32 v5, v0, 2, 2
    v_and_b32 v6, 3, v0
    v_lshl_add_u32 v7, v1, 3, v5
    v_lshlrev_b32 v7, 7, v7
    v_lshl_add_u32 v7, v6, 3, v7
    v_lshrrev_b32 v5, 1, v5
    v_and_b32 v6, 1, v1
    v_lshl_add_u32 v5, v6, 1, v5
    v_lshl_add_u32 v48, v5, 5, v7
    v_xor_b32 v49, 32, v48
    v_xor_b32 v50, 64, v48
    v_xor_b32 v51, 0x60, v48
    ''')
    e(f'''
    v_lshlrev_b32 v52, 16, v2
    v_lshl_add_u32 v52, v1, 4, v52
    s_lshl_b32 s6, s4, 13
    s_lshl_b32 s7, s66, 11
    s_add_u32 s6, s6, s7
    s_lshl_b32 s7, s67, 8
    s_add_u32 s6, s6, s7
    s_add_u32 s6, s6, {WS_QP}
    ''')
    g.base(46, 34, 's6')
    e(f'''
    v_lshlrev_b32 v53, 11, v2
    v_lshl_add_u32 v53, v1, 4, v53
    s_lshl_b32 s6, s64, 12
    s_lshl_b32 s7, s65, 8
    s_add_u32 s6, s6, s7
    s_add_u32 s6, s6, {WS_HP}
    ''')
    g.base(48, 34, 's6')
    e(f'v_mov_b32 v54, {L_FLAG}')
    e('s_mov_b32 s74, 0x00030003\ns_mov_b32 s75, 0x00030003')
    g.epoch_done(55)
    e('s_barrier')
    g.stamp(1)
    for ks in range(4):
        e(f's_waitcnt vmcnt({4 + 12 - 4*ks})')
        for ct in range(4):
            for t in range(2):
                e(f'ds_read_b64_tr_b16 v[{64+4*ct+2*t}:{65+4*ct+2*t}], v{48+ct} offset:{L_WQ + ks*4096 + t*512}')
        for ct in range(4):
            e(f's_waitcnt lgkmcnt({0 if O["stamps"] else 6-2*ct})')
            c = '0' if ks == 0 else f'v[{80+4*ct}:{83+4*ct}]'
            e(f'v_mfma_f32_16x16x32_bf16 v[{80+4*ct}:{83+4*ct}], v[{64+4*ct}:{67+4*ct}], v[{16+4*ks}:{19+4*ks}], {c}')
    g.stamp(2)
    e('s_mov_b64 exec, s[74:75]\ns_nop 3')
    for ct in range(4):
        g.tag(range(80 + 4*ct, 84 + 4*ct), 55)
        e(f'global_store_dwordx4 v52, v[{80+4*ct}:{83+4*ct}], s[46:47] offset:{ct*64} sc1')
    e('s_mov_b64 exec, -1')
    g.stamp(3)
    e('s_waitcnt vmcnt(4)')
    for k in range(4):
        e(f'''
        v_lshlrev_b32 v56, 16, v{40+k}
        v_and_b32 v57, 0xffff0000, v{40+k}
        v_lshlrev_b32 v58, 16, v{44+k}
        v_and_b32 v59, 0xffff0000, v{44+k}
        v_mul_f32 v56, v56, v58
        v_mul_f32 v57, v57, v59
        v_cvt_pk_bf16_f32 v56, v56, v57
        v_lshlrev_b32 v57, 16, v56
        v_and_b32 v56, 0xffff0000, v56
        v_add_f32 v57, v57, v56
        ''')
        e('v_mov_b32 v60, v57' if k == 0 else 'v_add_f32 v60, v60, v57')
    for r in (1, 2, 4, 8):
        e(f's_nop 1\nv_add_f32_dpp v60, v60, v60 row_ror:{r} row_mask:0xf bank_mask:0xf')
    e('''
    v_mov_b32 v61, v60
    s_nop 1
    v_permlane16_swap_b32 v60, v61
    v_add_f32 v60, v60, v61
    v_mov_b32 v61, v60
    s_nop 1
    v_permlane32_swap_b32 v60, v61
    v_add_f32 v60, v60, v61
    v_cvt_pk_bf16_f32 v60, v60, v60
    v_and_b32 v60, 0xffff0000, v60
    v_mul_f32 v60, 0xbfb8aa3b, v60
    v_exp_f32 v60, v60
    s_nop 0
    v_add_f32 v60, 1.0, v60
    v_rcp_f32 v60, v60
    s_nop 0
    v_cvt_pk_bf16_f32 v60, v60, v60
    v_and_b32 v60, 0xffff0000, v60
    v_sub_f32 v61, 1.0, v60
    v_cvt_pk_bf16_f32 v61, v61, v61
    v_and_b32 v61, 0xffff0000, v61
    ''')
    g.lds_wait(54, 0, 40, 56, sleep=1)
    for ks in range(2):
        for ct in range(4):
            for t in range(2):
                e(f'ds_read_b64_tr_b16 v[{64+4*ct+2*t}:{65+4*ct+2*t}], v{48+ct} offset:{L_W1 + ks*4096 + t*512}')
        e('s_waitcnt lgkmcnt(0)')
        for ct in range(4):
            c = '0' if ks == 0 else f'v[{96+4*ct}:{99+4*ct}]'
            e(f'v_mfma_f32_16x16x32_bf16 v[{96+4*ct}:{99+4*ct}], v[{64+4*ct}:{67+4*ct}], v[{32+4*ks}:{35+4*ks}], {c}')
    e('s_mov_b64 exec, s[74:75]\ns_nop 3')
    for ct in range(4):
        g.tag(range(96 + 4*ct, 100 + 4*ct), 55)
        e(f'global_store_dwordx4 v53, v[{96+4*ct}:{99+4*ct}], s[48:49] offset:{ct*64} sc1')
    e('s_mov_b64 exec, -1')
    g.stamp(4)
    if O['fp_layout'] == 'cons':
        e(f's_lshl_b32 s6, s65, 15\ns_lshl_b32 s7, s64, 10\ns_add_u32 s6, s6, s7\ns_add_u32 s6, s6, {WS_FP}')
        e('v_lshlrev_b32 v62, 4, v0')
    else:
        e(f's_lshl_b32 s6, s65, 15\ns_lshl_b32 s7, s64, 4\ns_add_u32 s6, s6, s7\ns_add_u32 s6, s6, {WS_FP}')
        e('v_lshlrev_b32 v62, 9, v0')
    g.base(50, 34, 's6')
    e('s_lshl_b32 s6, s70, 10\ns_add_u32 s6, s6, s71')
    g.base(52, 30, 's6')
    e('''
    s_mov_b32 s76, 0
    s_mov_b32 s77, -1
    v_cndmask_b32 v60, v60, v61, s[76:77]
    v_mov_b32 v68, 0
    v_mov_b32 v69, 0
    v_mov_b32 v70, 0
    v_mov_b32 v71, 0
    s_lshl_b32 s6, s72, 16
    s_and_b32 s7, s72, 0xffff0000
    s_lshl_b32 s78, s73, 16
    s_and_b32 s79, s73, 0xffff0000
    s_mov_b64 exec, s[76:77]
    v_mov_b32 v68, s6
    v_mov_b32 v69, s7
    v_mov_b32 v70, s78
    v_mov_b32 v71, s79
    s_mov_b64 exec, -1
    v_mov_b32 v63, 0
    ''')
    g.lds_wait(54, 8, 4, 56, sleep=2)
    L = g.label('Lf')
    e(f'{L}:')
    g.cap_check()
    e('global_load_dwordx4 v[64:67], v62, s[50:51] sc1\ns_waitcnt vmcnt(0)')
    g.tagcheck(range(64, 68), 56)
    e(f's_cbranch_vccnz {L}')
    g.stamp(5)
    for r in (1, 2, 4, 8):
        for k in range(4): e(f'v_add_f32_dpp v{64+k}, v{64+k}, v{64+k} row_ror:{r} row_mask:0xf bank_mask:0xf')
    for k in range(4): e(f'v_mov_b32 v{72+k}, v{64+k}')
    for k in range(4): e(f'v_permlane16_swap_b32 v{64+k}, v{72+k}')
    for k in range(4): e(f'v_add_f32 v{64+k}, v{64+k}, v{72+k}')
    def rnd4():
        e('''
        v_cvt_pk_bf16_f32 v72, v64, v65
        v_cvt_pk_bf16_f32 v73, v66, v67
        v_lshlrev_b32 v64, 16, v72
        v_and_b32 v65, 0xffff0000, v72
        v_lshlrev_b32 v66, 16, v73
        v_and_b32 v67, 0xffff0000, v73
        ''')
    rnd4()
    for k in range(4): e(f'v_add_f32 v{64+k}, v{64+k}, v{68+k}')
    rnd4()
    for k in range(4): e(f'v_mul_f32 v{64+k}, v{64+k}, v60')
    rnd4()
    for k in range(4): e(f'v_mov_b32 v{72+k}, v{64+k}')
    for k in range(4): e(f'v_permlane32_swap_b32 v{64+k}, v{72+k}')
    for k in range(4): e(f'v_add_f32 v{64+k}, v{64+k}, v{72+k}')
    e('''
    v_cvt_pk_bf16_f32 v72, v64, v65
    v_cvt_pk_bf16_f32 v73, v66, v67
    s_mov_b64 exec, 1
    global_store_dwordx2 v63, v[72:73], s[52:53]
    s_cmp_lg_u32 s2, 0
    s_cbranch_scc1 L_fin2
    v_mov_b32 v72, s82
    global_store_dword v63, v72, s[34:35] sc1
    L_fin2:
    ''')
    g.stamp(6)
    g.flush_stamps(7, {3:5, 4:6, 5:7, 6:8})
    e('s_endpgm')

    e('L_attn:')
    e(f'''
    s_lshr_b32 s66, s5, 4
    s_and_b32 s67, s5, 15
    s_lshl_b32 s6, s66, 16
    s_lshl_b32 s7, s4, 13
    s_add_u32 s6, s6, s7
    s_add_u32 s6, s6, {WS_QP + 4096}
    v_lshlrev_b32 v3, 4, v0
    v_lshrrev_b32 v4, 5, v0
    v_mul_u32_u24 v4, 320, v4
    v_and_b32 v5, 31, v0
    v_lshl_add_u32 v4, v5, 3, v4
    v_add_u32 v4, {L_Q}, v4
    v_and_b32 v5, 3, v2
    v_mul_u32_u24 v6, 320, v5
    v_lshl_add_u32 v6, v1, 4, v6
    v_add_u32 v7, {L_Q}, v6
    v_lshrrev_b32 v8, 2, v2
    v_mov_b32 v9, {L_ZERO}
    ''')
    for t in range(4):
        e(f'v_cmp_eq_u32 vcc, {t}, v8\ns_nop 1\nv_cndmask_b32 v{10+t}, v9, v7, vcc')
    e(f'''
    v_xor_b32 v14, v1, v2
    v_lshlrev_b32 v14, 4, v14
    v_lshl_add_u32 v14, v2, 8, v14
    v_xor_b32 v15, 64, v14
    v_xor_b32 v16, 0x80, v14
    v_xor_b32 v17, 0xc0, v14
    v_mul_u32_u24 v18, 320, v5
    v_lshl_add_u32 v18, v8, 5, v18
    v_lshl_add_u32 v18, v1, 3, v18
    v_add_u32 v18, {L_P}, v18
    v_mov_b32 v19, {L_FLAG}
    v_lshlrev_b32 v20, 9, v0
    s_waitcnt lgkmcnt(0)
    ''')
    g.base(40, 34, 's6')
    e(f's_lshl_b32 s6, s4, 11\ns_lshl_b32 s7, s5, 4\ns_add_u32 s6, s6, s7\ns_add_u32 s6, s6, {WS_ML}')
    g.base(42, 34, 's6')
    g.epoch()
    g.epoch_done(21)
    e('s_barrier')
    g.stamp(1)
    e(f's_sleep {O.get("qsleep", 16)}')
    L = g.label('Lq')
    e(f'{L}:')
    g.cap_check()
    for kq in range(4):
        for hf in range(2):
            r = 32 + kq * 8 + hf * 4
            e(f'global_load_dwordx4 v[{r}:{r+3}], v3, s[40:41] offset:{kq*2048 + hf*1024 - 4096} sc1')
    e('s_waitcnt vmcnt(0)')
    g.tagcheck(range(32, 64), 22)
    e(f's_cbranch_vccnz {L}')
    g.stamp(2)
    for k in range(8): e(f'v_add_f32 v{32+k}, v{32+k}, v{40+k}\nv_add_f32 v{48+k}, v{48+k}, v{56+k}')
    for k in range(8): e(f'v_add_f32 v{32+k}, v{32+k}, v{48+k}')
    for k in range(4): e(f'v_cvt_pk_bf16_f32 v{40+k}, v{32+2*k}, v{33+2*k}')
    e('ds_write_b64 v4, v[40:41]\nds_write_b64 v4, v[42:43] offset:640')
    for t in range(4):
        for ks in range(4):
            r = 64 + 16*t + 4*ks
            e(f'ds_read_b128 v[{r}:{r+3}], v{10+t} offset:{ks*64}')
    g.lds_wait(19, 0, 32, 22)
    g.stamp(3)
    def kread(T):
        for ks in range(4):
            r = 128 + 16*(T & 3) + 4*ks
            e(f'ds_read_b128 v[{r}:{r+3}], v{14+ks} offset:{L_K + T*4096}')
    kread(0); kread(1); kread(2)
    for T in range(8):
        if T + 3 < 8: kread(T + 3)
        ahead = min(3, 7 - T)
        e(f's_waitcnt lgkmcnt({0 if O["stamps"] else 4*ahead})')
        D = 24 + 4*(T >> 2); t = T & 3
        for ks in range(4):
            a = 128 + 16*(T & 3) + 4*ks; b = 64 + 16*t + 4*ks
            c = '0' if (t == 0 and ks == 0) else f'v[{D}:{D+3}]'
            e(f'v_mfma_f32_16x16x32_bf16 v[{D}:{D+3}], v[{a}:{a+3}], v[{b}:{b+3}], {c}')
    e('s_mov_b32 s68, 0x3db504f3\ns_mov_b32 s69, 0x3fb8aa3b\ns_nop 5')
    def rnd8():
        for k in range(4): e(f'v_cvt_pk_bf16_f32 v{32+k}, v{24+2*k}, v{25+2*k}')
        for k in range(4): e(f'v_lshlrev_b32 v{24+2*k}, 16, v{32+k}\nv_and_b32 v{25+2*k}, 0xffff0000, v{32+k}')
    rnd8()
    for k in range(8): e(f'v_mul_f32 v{24+k}, s68, v{24+k}')
    rnd8()
    e('''
    v_max3_f32 v36, v24, v25, v26
    v_max3_f32 v37, v27, v28, v29
    v_max3_f32 v36, v36, v30, v31
    v_max_f32 v36, v36, v37
    s_nop 1
    v_max_f32_dpp v36, v36, v36 row_ror:4 row_mask:0xf bank_mask:0xf
    s_nop 1
    v_max_f32_dpp v36, v36, v36 row_ror:8 row_mask:0xf bank_mask:0xf
    v_mov_b32 v37, v36
    s_nop 1
    v_permlane16_swap_b32 v36, v37
    v_max_f32 v36, v36, v37
    v_mov_b32 v37, v36
    s_nop 1
    v_permlane32_swap_b32 v36, v37
    v_max_f32 v36, v36, v37
    ''')
    for k in range(8): e(f'v_sub_f32 v{24+k}, v{24+k}, v36')
    for k in range(8): e(f'v_mul_f32 v{24+k}, s69, v{24+k}')
    for k in range(8): e(f'v_exp_f32 v{24+k}, v{24+k}')
    e('s_nop 0')
    for k in range(4): e(f'v_cvt_pk_bf16_f32 v{32+k}, v{24+2*k}, v{25+2*k}')
    e('''
    v_mov_b32 v22, 1
    ds_write_b64 v18, v[32:33]
    ds_write_b64 v18, v[34:35] offset:128
    ds_write_b32 v19, v22 offset:4
    v_add_f32 v24, v24, v25
    v_add_f32 v26, v26, v27
    v_add_f32 v28, v28, v29
    v_add_f32 v30, v30, v31
    v_add_f32 v24, v24, v26
    v_add_f32 v28, v28, v30
    v_add_f32 v37, v24, v28
    s_nop 1
    v_add_f32_dpp v37, v37, v37 row_ror:4 row_mask:0xf bank_mask:0xf
    s_nop 1
    v_add_f32_dpp v37, v37, v37 row_ror:8 row_mask:0xf bank_mask:0xf
    v_mov_b32 v38, v37
    s_nop 1
    v_permlane16_swap_b32 v37, v38
    v_add_f32 v37, v37, v38
    v_mov_b32 v38, v37
    s_nop 1
    v_permlane32_swap_b32 v37, v38
    v_add_f32 v37, v37, v38
    v_mov_b32 v38, v36
    v_mov_b32 v39, v37
    ''')
    g.tag(range(36, 40), 21)
    e('s_mov_b64 exec, 0xf\nglobal_store_dwordx4 v20, v[36:39], s[42:43] sc1')
    g.stamp(4)
    g.flush_stamps(5, {2:9, 4:10})
    e('s_endpgm')

    e('L_ffn:')
    e(f'''
    v_mov_b32 v4, 0
    v_mov_b32 v5, 0
    v_lshlrev_b32 v3, 3, v0
    v_add_u32 v3, {L_ZERO}, v3
    ds_write_b64 v3, v[4:5]
    v_and_b32 v6, 1, v1
    v_lshlrev_b32 v7, 11, v6
    v_lshl_add_u32 v7, v2, 4, v7
    v_min_u32 v8, 13, v2
    v_lshlrev_b32 v8, 3, v8
    v_mul_u32_u24 v9, 160, v6
    v_lshl_add_u32 v9, v2, 3, v9
    v_add_u32 v9, {L_ACTH}, v9
    v_and_b32 v10, 1, v2
    v_mul_u32_u24 v10, 160, v10
    v_lshl_add_u32 v10, v1, 4, v10
    v_add_u32 v10, {L_ACTH}, v10
    v_bfe_u32 v11, v0, 2, 2
    v_and_b32 v12, 3, v0
    v_lshl_add_u32 v13, v1, 3, v11
    v_lshlrev_b32 v13, 7, v13
    v_lshl_add_u32 v13, v12, 3, v13
    v_lshrrev_b32 v11, 1, v11
    v_lshl_add_u32 v11, v6, 1, v11
    v_lshl_add_u32 v16, v11, 5, v13
    v_add_u32 v16, {L_W2}, v16
    v_xor_b32 v17, 32, v16
    v_xor_b32 v18, 64, v16
    v_xor_b32 v19, 0x60, v16
    v_mov_b32 v20, {L_FLAG}
    s_lshl_b32 s6, s64, 12
    s_add_u32 s6, s6, {WS_HP}
    s_mul_i32 s7, s64, 112
    s_waitcnt lgkmcnt(0)
    ''')
    g.base(40, 34, 's6'); g.base(42, 22, 's7')
    g.epoch()
    e('global_load_dwordx2 v[22:23], v8, s[42:43]')
    if O['fp_layout'] == 'cons':
        e(f's_lshl_b32 s6, s65, 15\ns_lshl_b32 s7, s64, 4\ns_add_u32 s6, s6, s7\ns_add_u32 s6, s6, {WS_FP + 512}')
        e('v_lshlrev_b32 v24, 14, v2\nv_lshl_add_u32 v24, v1, 10, v24')
        ctstride = 4096
    else:
        e(f's_lshl_b32 s6, s65, 15\ns_lshl_b32 s7, s64, 9\ns_add_u32 s6, s6, s7\ns_add_u32 s6, s6, {WS_FP + 16384}')
        e('v_lshlrev_b32 v24, 8, v2\nv_lshl_add_u32 v24, v1, 4, v24')
        ctstride = 64
    g.base(44, 34, 's6')
    for ct in range(1, 4): e(f'v_add_u32 v{24+ct}, {ct*ctstride}, v24')
    e('s_mov_b32 s74, 0x00030003\ns_mov_b32 s75, 0x00030003')
    e('s_mov_b32 s76, 0x3fff3fff\ns_mov_b32 s77, 0')
    g.epoch_done(21)
    e('s_barrier')
    g.stamp(1)
    g.lds_wait(20, 0, O.get('hp_after', 56), 28, sleep=4)
    e('s_mov_b64 exec, s[76:77]')
    L = g.label('Lh')
    e(f'{L}:')
    g.cap_check()
    for j in range(8): e(f'global_load_dwordx4 v[{32+4*j}:{35+4*j}], v7, s[40:41] offset:{j*256} sc1')
    e('s_waitcnt vmcnt(0)')
    g.tagcheck(range(32, 64), 28)
    e(f's_cbranch_vccnz {L}')
    g.stamp(2)
    for k in range(16): e(f'v_add_f32 v{32+k}, v{32+k}, v{48+k}')
    for k in range(8): e(f'v_add_f32 v{32+k}, v{32+k}, v{40+k}')
    for k in range(4): e(f'v_add_f32 v{32+k}, v{32+k}, v{36+k}')
    def r4():
        e('''
        v_cvt_pk_bf16_f32 v36, v32, v33
        v_cvt_pk_bf16_f32 v37, v34, v35
        v_lshlrev_b32 v32, 16, v36
        v_and_b32 v33, 0xffff0000, v36
        v_lshlrev_b32 v34, 16, v37
        v_and_b32 v35, 0xffff0000, v37
        ''')
    r4()
    e('''
    v_lshlrev_b32 v40, 16, v22
    v_and_b32 v41, 0xffff0000, v22
    v_lshlrev_b32 v42, 16, v23
    v_and_b32 v43, 0xffff0000, v23
    ''')
    for k in range(4): e(f'v_add_f32 v{32+k}, v{32+k}, v{40+k}')
    r4()
    import math, struct
    c1 = struct.unpack('<I', struct.pack('<f', 0.044715))[0]
    c2 = struct.unpack('<I', struct.pack('<f', -2.0 * math.log2(math.e) * math.sqrt(2.0 / math.pi)))[0]
    e(f's_mov_b32 s68, {c1:#x}\ns_mov_b32 s69, {c2:#x}')
    for k in range(4): e(f'v_mul_f32 v{40+k}, v{32+k}, v{32+k}')
    for k in range(4): e(f'v_fma_f32 v{40+k}, v{40+k}, s68, 1.0')
    for k in range(4): e(f'v_mul_f32 v{40+k}, v{40+k}, v{32+k}')
    for k in range(4): e(f'v_mul_f32 v{40+k}, s69, v{40+k}')
    for k in range(4): e(f'v_exp_f32 v{40+k}, v{40+k}')
    for k in range(4): e(f'v_add_f32 v{40+k}, 1.0, v{40+k}')
    for k in range(4): e(f'v_rcp_f32 v{40+k}, v{40+k}')
    for k in range(4): e(f'v_mul_f32 v{32+k}, v{32+k}, v{40+k}')
    e('''
    v_cvt_pk_bf16_f32 v4, v32, v33
    v_cvt_pk_bf16_f32 v5, v34, v35
    s_mov_b32 exec_lo, -1
    ds_write_b64 v9, v[4:5]
    s_mov_b64 exec, -1
    ds_read_b128 v[44:47], v10
    ds_read_b128 v[48:51], v10 offset:64
    ''')
    g.lds_wait(20, 0, 96, 28)
    g.stamp(3)
    for ks in range(2):
        for ct in range(4):
            for t in range(2):
                r = 64 + 16*ks + 4*ct + 2*t
                e(f'ds_read_b64_tr_b16 v[{r}:{r+1}], v{16+ct} offset:{ks*4096 + t*512}')
    for ks in range(2):
        e(f's_waitcnt lgkmcnt({0 if (O["stamps"] or ks) else 8})')
        for ct in range(4):
            r = 64 + 16*ks + 4*ct
            c = '0' if ks == 0 else f'v[{96+4*ct}:{99+4*ct}]'
            e(f'v_mfma_f32_16x16x32_bf16 v[{96+4*ct}:{99+4*ct}], v[{r}:{r+3}], v[{44+4*ks}:{47+4*ks}], {c}')
    e('s_mov_b64 exec, s[74:75]\ns_nop 3')
    for ct in range(4):
        g.tag(range(96 + 4*ct, 100 + 4*ct), 21)
        e(f'global_store_dwordx4 v{24+ct}, v[{96+4*ct}:{99+4*ct}], s[44:45] sc1')
    g.stamp(4)
    g.flush_stamps(5, {2:11, 4:12})
    e('s_endpgm')

    e('L_pv:')
    e(f'''
    s_sub_u32 s66, s3, 4
    v_and_b32 v5, 3, v2
    v_mul_u32_u24 v6, 320, v5
    v_lshl_add_u32 v6, v1, 4, v6
    v_add_u32 v7, {L_P}, v6
    v_lshrrev_b32 v8, 2, v2
    v_mov_b32 v9, {L_ZERO}
    v_cmp_eq_u32 vcc, 0, v8
    s_nop 1
    v_cndmask_b32 v10, v9, v7, vcc
    v_cmp_eq_u32 vcc, 1, v8
    s_nop 1
    v_cndmask_b32 v11, v9, v7, vcc
    v_bfe_u32 v12, v0, 2, 2
    v_and_b32 v13, 3, v0
    v_lshl_add_u32 v14, v1, 3, v12
    v_and_b32 v15, 1, v1
    v_lshl_add_u32 v16, v15, 2, v12
    s_lshl_b32 s6, s66, 1
    v_xor_b32 v16, s6, v16
    v_lshlrev_b32 v16, 5, v16
    v_lshl_add_u32 v16, v14, 8, v16
    v_lshl_add_u32 v16, v13, 3, v16
    v_add_u32 v16, {L_V}, v16
    v_xor_b32 v17, 32, v16
    v_lshrrev_b32 v18, 1, v12
    v_lshl_add_u32 v18, v15, 1, v18
    v_xor_b32 v18, s66, v18
    v_lshlrev_b32 v18, 5, v18
    v_lshl_add_u32 v18, v14, 7, v18
    v_lshl_add_u32 v18, v13, 3, v18
    v_add_u32 v18, {L_WO}, v18
    v_mov_b32 v19, {L_FLAG}
    v_lshlrev_b32 v20, 14, v5
    v_lshl_add_u32 v20, v8, 6, v20
    v_lshl_add_u32 v20, v1, 4, v20
    v_lshlrev_b32 v22, 4, v0
    v_lshlrev_b32 v23, 4, v2
    v_lshrrev_b32 v24, 5, v0
    v_add_u32 v25, s6, v24
    v_mul_u32_u24 v25, 288, v25
    v_and_b32 v26, 31, v0
    v_lshl_add_u32 v25, v26, 3, v25
    v_add_u32 v25, {L_ACT}, v25
    v_and_b32 v26, 7, v2
    v_mul_u32_u24 v26, 288, v26
    v_lshl_add_u32 v26, v1, 4, v26
    v_add_u32 v26, {L_ACT}, v26
    s_and_b32 s7, s66, 1
    s_lshl_b32 s7, s7, 3
    v_add_u32 v27, s7, v24
    v_lshlrev_b32 v27, 2, v27
    s_lshl_b32 s6, s4, 16
    s_lshl_b32 s7, s5, 9
    s_add_u32 s6, s6, s7
    s_lshl_b32 s7, s66, 7
    s_add_u32 s6, s6, s7
    s_add_u32 s6, s6, {WS_OP}
    s_waitcnt lgkmcnt(0)
    ''')
    g.base(40, 34, 's6')
    g.epoch()
    e(f's_lshl_b32 s6, s64, 14\ns_lshl_b32 s7, s66, 12\ns_add_u32 s6, s6, s7\ns_add_u32 s6, s6, {WS_OP}')
    g.base(42, 34, 's6')
    e(f's_lshl_b32 s6, s64, 9\ns_lshr_b32 s7, s66, 1\ns_lshl_b32 s7, s7, 8\ns_add_u32 s6, s6, s7\ns_add_u32 s6, s6, {WS_ML}')
    g.base(44, 34, 's6')
    if O['fp_layout'] == 'cons':
        e(f's_lshl_b32 s6, s65, 15\ns_lshl_b32 s7, s64, 4\ns_add_u32 s6, s6, s7\ns_lshl_b32 s7, s66, 12\ns_add_u32 s6, s6, s7\ns_add_u32 s6, s6, {WS_FP}')
        e('v_lshlrev_b32 v28, 14, v8\nv_lshl_add_u32 v28, v1, 10, v28')
    else:
        e(f's_lshl_b32 s6, s65, 15\ns_lshl_b32 s7, s64, 9\ns_add_u32 s6, s6, s7\ns_lshl_b32 s7, s66, 6\ns_add_u32 s6, s6, s7\ns_add_u32 s6, s6, {WS_FP}')
        e('v_lshlrev_b32 v28, 8, v8\nv_lshl_add_u32 v28, v1, 4, v28')
    g.base(46, 34, 's6')
    e('s_mov_b32 s74, 0x00ff00ff\ns_mov_b32 s75, 0x00ff00ff')
    e('s_mov_b32 s76, 0x00110011\ns_mov_b32 s77, 0x00110011')
    e('s_mov_b32 s69, 0x3fb8aa3b')
    g.epoch_done(21)
    e('s_barrier')
    g.stamp(1)
    g.lds_wait(19, 4, 1, 29, sleep=2)
    for ee in range(2):
        for ks in range(4):
            r = 32 + 16*ee + 4*ks
            e(f'ds_read_b128 v[{r}:{r+3}], v{10+ee} offset:{ks*64}')
    g.stamp(2)
    for ks in range(4):
        g.lds_wait(19, 0, 48 + 8*ks, 29)
        for ee in range(2):
            for t in range(2):
                r = 64 + 4*ee + 2*t
                e(f'ds_read_b64_tr_b16 v[{r}:{r+1}], v{16+ee} offset:{ks*8192 + t*1024}')
        for ee in range(2):
            e(f's_waitcnt lgkmcnt({0 if (O["stamps"] or ee) else 2})')
            c = '0' if (ks == 0 and ee == 0) else 'v[72:75]'
            e(f'v_mfma_f32_16x16x32_bf16 v[72:75], v[{64+4*ee}:{67+4*ee}], v[{32+16*ee+4*ks}:{35+16*ee+4*ks}], {c}')
    e('s_mov_b64 exec, s[74:75]\ns_nop 6')
    g.tag(range(72, 76), 21)
    e('global_store_dwordx4 v20, v[72:75], s[40:41] sc1')
    e('s_mov_b64 exec, -1')
    g.stamp(3)
    L = g.label('Lm')
    e(f'{L}:')
    g.cap_check()
    e('global_load_dwordx4 v[32:35], v23, s[44:45] sc1\ns_waitcnt vmcnt(0)')
    g.tagcheck(range(32, 36), 29)
    e(f's_cbranch_vccnz {L}')
    e('v_and_b32 v32, 0xffff0000, v32\nv_mov_b32 v34, v32')
    for r in (1, 2, 4, 8): e(f's_nop 1\nv_max_f32_dpp v34, v34, v34 row_ror:{r} row_mask:0xf bank_mask:0xf')
    e('''
    v_sub_f32 v32, v32, v34
    v_mul_f32 v32, s69, v32
    v_exp_f32 v32, v32
    s_nop 0
    v_mul_f32 v33, v33, v32
    ''')
    for r in (1, 2, 4, 8): e(f's_nop 1\nv_add_f32_dpp v33, v33, v33 row_ror:{r} row_mask:0xf bank_mask:0xf')
    e('v_rcp_f32 v33, v33\ns_nop 0\nv_mul_f32 v32, v32, v33')
    for k in range(4): e(f'ds_bpermute_b32 v{36+k}, v27, v32 offset:{8*k}')
    g.lds_wait(19, 0, 88, 29)
    for ks in range(4):
        for t in range(2):
            r = 80 + 4*ks + 2*t
            e(f'ds_read_b64_tr_b16 v[{r}:{r+1}], v18 offset:{ks*4096 + t*512}')
    g.stamp(4)
    L = g.label('Lo')
    e(f'{L}:')
    g.cap_check()
    for k in range(4): e(f'global_load_dwordx4 v[{40+4*k}:{43+4*k}], v22, s[42:43] offset:{k*1024} sc1')
    e('s_waitcnt vmcnt(0)')
    g.tagcheck(range(40, 56), 29)
    e(f's_cbranch_vccnz {L}')
    g.stamp(5)
    e('s_waitcnt lgkmcnt(0)')
    for i in range(4): e(f'v_mul_f32 v{56+i}, v36, v{40+i}')
    for k in range(1, 4):
        for i in range(4): e(f'v_fmac_f32 v{56+i}, v{36+k}, v{40+4*k+i}')
    e('''
    v_cvt_pk_bf16_f32 v60, v56, v57
    v_cvt_pk_bf16_f32 v61, v58, v59
    v_mov_b32 v62, 1
    ds_write_b64 v25, v[60:61]
    s_mov_b64 exec, 1
    ds_add_u32 v19, v62 offset:8
    s_mov_b64 exec, -1
    ''')
    g.lds_wait(19, 8, 4, 29)
    for ks in range(4): e(f'ds_read_b128 v[{40+4*ks}:{43+4*ks}], v26 offset:{ks*64}')
    for ks in range(4):
        e(f's_waitcnt lgkmcnt({0 if O["stamps"] else 3-ks})')
        c = '0' if ks == 0 else 'v[72:75]'
        e(f'v_mfma_f32_16x16x32_bf16 v[72:75], v[{80+4*ks}:{83+4*ks}], v[{40+4*ks}:{43+4*ks}], {c}')
    e('s_nop 7')
    for qp in ('[1,0,3,2]', '[2,3,0,1]'):
        for i in range(4): e(f'v_add_f32_dpp v{72+i}, v{72+i}, v{72+i} quad_perm:{qp} row_mask:0xf bank_mask:0xf')
    e('s_mov_b64 exec, s[76:77]')
    g.tag(range(72, 76), 21)
    e('global_store_dwordx4 v28, v[72:75], s[46:47] sc1')
    g.stamp(6)
    g.flush_stamps(7, {3:13, 5:14, 6:15})
    e('L_end:\ns_endpgm')
    g.o.append(f'''.section .rodata,"a"
.p2align 6
.amdhsa_kernel {NAME}_kernel
  .amdhsa_next_free_vgpr 256
  .amdhsa_next_free_sgpr 102
  .amdhsa_accum_offset 256
  .amdhsa_group_segment_fixed_size 0
  .amdhsa_kernarg_size 112
  .amdhsa_user_sgpr_count 2
  .amdhsa_user_sgpr_kernarg_segment_ptr 1
  .amdhsa_system_sgpr_workgroup_id_x 1
.end_amdhsa_kernel''')
    open(fname, 'w').write('\n'.join(g.o) + '\n')

if __name__ == '__main__':
    gen('k_nt.s', nt=True)
    gen('k_def.s', nt=False)
    gen('k_nt_st.s', nt=True, stamps=True)
    gen('k_def_st.s', nt=False, stamps=True)
    gen('k_nt_dbg.s', nt=True, stamps=True, dbgtime=True)
    gen('k_def_dbg.s', nt=False, stamps=True, dbgtime=True)
```
